```python
import torch

def _softmax(x, axis=-1):
    return torch.softmax(x, dim=axis)
def _gelu(x):
    return torch.nn.functional.gelu(x, approximate="tanh")
def _silu(x):
    return torch.nn.functional.silu(x)
def _sigmoid(x):
    return torch.sigmoid(x)
def _layernorm(x, axis=-1, eps=1e-5):
    m = x.mean(dim=axis, keepdim=True)
    v = x.var(dim=axis, keepdim=True, unbiased=False)
    return (x - m) / torch.sqrt(v + eps)
def _scatter_add(tgt, idx, src, axis=0):
    return tgt.clone().index_add_(axis, idx, src)
def _segment_sum(src, seg, n):
    out = torch.zeros((n,) + src.shape[1:], dtype=src.dtype)
    return out.index_add_(0, seg, src)
def _pad(x, pw):
    flat = tuple(v for pair in reversed(pw) for v in pair)
    return torch.nn.functional.pad(x, flat)

kernel_name = 'recurrent_scan__linear_attn_block__glu_gated_glu__prompt'

def setup_inputs():

    _w = (lambda a: (lambda t: t.to(torch.bfloat16) if t.is_floating_point() else t)(torch.as_tensor(a)))
    def _A_setup():
        B, S, D = 1, 2048, 512
        return {
            "x": _w((lambda *s: torch.randn(*s, dtype=torch.bfloat16) * 0.05)(B, S, D)),
            "wqkv": _w((lambda *s: torch.randn(*s, dtype=torch.bfloat16) * 0.05)(D, 3 * D)),
            "wo": _w((lambda *s: torch.randn(*s, dtype=torch.bfloat16) * 0.05)(D, D)),
        }
    _A_in = _A_setup()

    def _B_setup():
        B, S, D, F = 1, 2048, 512, 1792
        return {
            "x": _w((lambda *s: torch.randn(*s, dtype=torch.bfloat16) * 0.05)(B, S, D)),
            "w_gate": _w((lambda *s: torch.randn(*s, dtype=torch.bfloat16) * 0.05)(D, F)),
            "w_up": _w((lambda *s: torch.randn(*s, dtype=torch.bfloat16) * 0.05)(D, F)),
            "w_down": _w((lambda *s: torch.randn(*s, dtype=torch.bfloat16) * 0.05)(F, D)),
        }
    _B_in = _B_setup()

    return {
        "A_x": _A_in["x"],
        "A_wqkv": _A_in["wqkv"],
        "A_wo": _A_in["wo"],
        "B_x": _B_in["x"],
        "B_w_gate": _B_in["w_gate"],
        "B_w_up": _B_in["w_up"],
        "B_w_down": _B_in["w_down"],
    }

def reference(A_x, A_wqkv, A_wo, B_x, B_w_gate, B_w_up, B_w_down):
    def _A_ref(x, wqkv, wo):
        B, S, D = x.shape
        H = 32; Dh = D // H
        qkv = (lambda x, *d: x.permute(*d))((x @ wqkv).reshape(B, S, 3, H, Dh), 2, 0, 3, 1, 4)
        q, k, v = qkv[0], qkv[1], qkv[2]
        phi = lambda t: torch.where(t > 0, t + 1, torch.exp(t)) + 1e-6
        pq, pk = phi(q), phi(k)
        kv = torch.einsum("bhsd,bhse->bhde", pk, v)
        z = torch.einsum("bhsd->bhd", pk)
        num = torch.einsum("bhqd,bhde->bhqe", pq, kv)
        den = torch.einsum("bhqd,bhd->bhq", pq, z)[..., None] + 1e-6
        o = num / den
        return (lambda x, *d: x.permute(*d))(o, 0, 2, 1, 3).reshape(B, S, D) @ wo

    def _B_ref(x, w_gate, w_up, w_down):
        g = torch.einsum("bsd,df->bsf", x, w_gate)
        u = torch.einsum("bsd,df->bsf", x, w_up)
        h = _sigmoid(g) * u
        return torch.einsum("bsf,fd->bsd", h, w_down)

    x = A_x
    xn = _layernorm(x, axis=-1)
    s = _A_ref(xn, A_wqkv, A_wo)
    g = _silu(_B_ref(xn, B_w_gate, B_w_up, B_w_down))
    return x + s * g
```

```python
import re

_REG = re.compile(r'^(-?)(abs\()?([vas])(\d+|\[(\d+):(\d+)\])\)?$')


def regs_of(tok):
    tok = tok.strip()
    if tok in ('vcc', 'exec', 'm0', 'scc'):
        return [tok]
    if tok in ('vcc_lo', 'vcc_hi'):
        return ['vcc']
    if tok in ('exec_lo', 'exec_hi'):
        return ['exec']
    m = _REG.match(tok)
    if not m:
        return []
    f = m.group(3)
    if m.group(5) is not None:
        return [f + str(i) for i in range(int(m.group(5)), int(m.group(6)) + 1)]
    return [f + m.group(4)]


def split_ops(s):
    out, cur, depth = [], '', 0
    for ch in s:
        if ch in '[(':
            depth += 1
        if ch in '])':
            depth -= 1
        if ch == ',' and depth == 0:
            out.append(cur.strip())
            cur = ''
        else:
            cur += ch
    if cur.strip():
        out.append(cur.strip())
    return out


TRANS = ('v_exp_f32', 'v_log_f32', 'v_rcp_f32', 'v_rsq_f32', 'v_sqrt_f32', 'v_sin_f32', 'v_cos_f32')


class Inst:
    __slots__ = ('text', 'op', 'kind', 'w', 'r', 'tag', 'need', 'addr_r', 'data_r', 'mf', 'cost', 'comment')

    def __init__(self, text, tag=None, need=None, comment=None):
        self.text = text.strip()
        self.tag = tag
        self.need = need
        self.comment = comment
        self.w, self.r = set(), set()
        self.addr_r, self.data_r = set(), set()
        self.mf = None
        self.cost = 1
        t = self.text
        if t.endswith(':'):
            self.op, self.kind, self.cost = t, 'label', 0
            return
        if t.startswith('.') or t.startswith(';'):
            self.op, self.kind, self.cost = t, 'directive', 0
            return
        if t.startswith('@'):
            self.op, self.kind, self.cost = t, 'pseudo', 0
            return
        parts = t.split(None, 1)
        op = parts[0]
        self.op = op
        rest = parts[1] if len(parts) > 1 else ''
        ops = split_ops(rest)
        mods = ''
        if ops:
            last = ops[-1].split(None, 1)
            ops[-1] = last[0]
            mods = last[1] if len(last) > 1 else ''
        R = lambda i: regs_of(ops[i]) if i < len(ops) else []
        base = re.sub(r'_(e32|e64|dpp|sdwa)$', '', op)
        if op.startswith('v_mfma'):
            self.kind = 'mfma'
            self.w = set(R(0))
            a, b, c = set(R(1)), set(R(2)), set(R(3))
            self.r = a | b | c
            passes = 8 if '32x32x16' in op or '32x32x8' in op else 4
            self.mf = dict(ab=a | b, c=c, passes=passes)
            self.cost = 2
        elif op.startswith('v_'):
            self.kind = 'trans' if base in TRANS else 'valu'
            if self.kind == 'trans':
                self.cost = 2
            if base.startswith('v_cmp'):
                self.w = set(R(0))
                for i in range(1, len(ops)):
                    self.r |= set(R(i))
            elif base in ('v_permlane32_swap_b32', 'v_permlane16_swap_b32'):
                self.w = set(R(0)) | set(R(1))
                self.r = set(self.w)
            elif base in ('v_add_co_u32', 'v_sub_co_u32', 'v_addc_co_u32', 'v_subb_co_u32'):
                self.w = set(R(0)) | set(R(1))
                for i in range(2, len(ops)):
                    self.r |= set(R(i))
            else:
                self.w = set(R(0))
                for i in range(1, len(ops)):
                    self.r |= set(R(i))
                if base in ('v_fmac_f32', 'v_dot2c_f32_bf16', 'v_writelane_b32') or op.endswith('_dpp') or op.endswith('_sdwa'):
                    self.r |= self.w
            self.r.add('exec')
        elif op.startswith('ds_'):
            self.kind = 'ds'
            if op.startswith('ds_read') or op.startswith('ds_bpermute') or op.startswith('ds_swizzle'):
                self.w = set(R(0))
                for i in range(1, len(ops)):
                    self.r |= set(R(i))
            else:
                for i in range(len(ops)):
                    self.r |= set(R(i))
        elif op.startswith('buffer_') or op.startswith('global_'):
            allr = lambda lo: set().union(*[set(R(i)) for i in range(lo, len(ops))]) if len(ops) > lo else set()
            islds = ' lds' in (' ' + mods) or 'load_lds' in op
            if islds:
                self.kind = 'dma'
                self.r = allr(0) | {'m0'}
            elif '_load' in op:
                self.kind = 'vload'
                self.w = set(R(0))
                self.r = allr(1)
            elif 'atomic' in op and 'sc0' in mods:
                self.kind = 'vload'
                self.w = set(R(0))
                self.r = allr(0)
            elif op.startswith('buffer_wbl2') or op.startswith('buffer_inv'):
                self.kind = 'vstore'
            else:
                self.kind = 'vstore'
                self.r = allr(0)
                if op.startswith('buffer_'):
                    self.data_r = set(R(0))
                else:
                    self.data_r = set(R(1))
        elif op.startswith('s_load') or op.startswith('s_buffer_load') or op in ('s_memtime', 's_memrealtime'):
            self.kind = 'smem'
            self.w = set(R(0))
            for i in range(1, len(ops)):
                self.r |= set(R(i))
        elif op == 's_waitcnt':
            self.kind = 'wait'
        elif op == 's_barrier':
            self.kind = 'barrier'
        elif op == 's_nop':
            self.kind = 'nop'
            self.cost = int(ops[0]) + 1
        elif op.startswith('s_cbranch') or op in ('s_branch', 's_setpc_b64', 's_endpgm'):
            self.kind = 'branch'
            if 'scc' in op:
                self.r = {'scc'}
            if 'vcc' in op:
                self.r = {'vcc'}
            if 'exec' in op:
                self.r = {'exec'}
        elif op.startswith('s_'):
            self.kind = 'salu'
            if op.startswith('s_cmp') or op.startswith('s_bitcmp'):
                self.w = {'scc'}
                for i in range(len(ops)):
                    self.r |= set(R(i))
            elif op in ('s_sleep', 's_setprio'):
                pass
            else:
                self.w = set(R(0))
                for i in range(1, len(ops)):
                    self.r |= set(R(i))
                if not (op.startswith('s_mov') or op.startswith('s_mul') or op.startswith('s_getpc') or op.startswith('s_getreg') or op.startswith('s_cselect')):
                    self.w.add('scc')
                if op.startswith('s_cselect') or op.startswith('s_addc') or op.startswith('s_subb'):
                    self.r.add('scc')
                if 'saveexec' in op:
                    self.w.add('exec')
                    self.r.add('exec')
        else:
            raise ValueError('unknown instruction: ' + t)

    def is_valu(self):
        return self.kind in ('valu', 'trans')


def I(text, **kw):
    return Inst(text, **kw)


VM_KINDS = ('vload', 'vstore', 'dma')


def wait_text(vm, lg):
    parts = []
    if vm is not None:
        parts.append('vmcnt(%d)' % min(vm, 63))
    if lg is not None:
        parts.append('lgkmcnt(%d)' % min(lg, 15))
    return 's_waitcnt ' + ' '.join(parts)


def insert_waits(prog, vm0=None, lg0=None):
    vm = list(vm0 or [])
    lg = list(lg0 or [])
    out = []

    def required(q, regs, tags):
        idx = -1
        for i, en in enumerate(q):
            if (en.w & regs) or (en.tag is not None and en.tag in tags):
                idx = i
        return None if idx < 0 else len(q) - 1 - idx

    for ins in prog:
        if ins.kind in ('label', 'directive'):
            out.append(ins)
            continue
        if ins.kind == 'wait':
            m = re.search(r'vmcnt\((\d+)\)', ins.text)
            if m:
                n = int(m.group(1))
                vm = vm[len(vm) - n:] if n < len(vm) else vm
                if n == 0:
                    vm = []
            m = re.search(r'lgkmcnt\((\d+)\)', ins.text)
            if m:
                n = int(m.group(1))
                if n == 0:
                    lg = []
                elif not any(x.kind == 'smem' for x in lg):
                    lg = lg[len(lg) - n:] if n < len(lg) else lg
            out.append(ins)
            continue
        regs = set(ins.r) | set(ins.w)
        tags = set()
        if ins.need:
            for n in ins.need:
                rr = regs_of(n)
                if rr:
                    regs |= set(rr)
                else:
                    tags.add(n)
        nv = required(vm, regs, tags)
        nl = required(lg, regs, tags)
        if nl is not None and any(x.kind == 'smem' for x in lg):
            nl = 0
        if nv is not None or nl is not None:
            w = Inst(wait_text(nv, nl))
            out.append(w)
            if nv is not None:
                n = min(nv, 63)
                vm = vm[len(vm) - n:] if n > 0 else []
            if nl is not None:
                n = min(nl, 15)
                lg = lg[len(lg) - n:] if n > 0 else []
        if ins.kind != 'pseudo':
            out.append(ins)
        if ins.kind in VM_KINDS and ins.tag != 'nocount':
            vm.append(ins)
            assert len(vm) <= 63, 'more than 63 vector memory operations outstanding at: ' + ins.text
        elif ins.kind in ('ds', 'smem'):
            lg.append(ins)
    return out, vm, lg


def _need_states(p, c):
    n = 0
    pw_v = {x for x in p.w if x[0] in 'va' and x not in ('vcc',)}
    pw_s = {x for x in p.w if (x[0] == 's' and x != 'scc') or x == 'vcc'}
    if p.is_valu():
        if c.kind == 'mfma' and (pw_v & c.r):
            n = max(n, 2)
        if p.kind == 'trans' and c.kind in ('valu', 'mfma', 'trans') and (pw_v & c.r):
            n = max(n, 1)
        if c.op.startswith('v_readfirstlane') or c.op.startswith('v_readlane'):
            if pw_v & c.r:
                n = max(n, 1)
            if pw_s & c.r:
                n = max(n, 4)
        if c.op.startswith('v_permlane') and (pw_v & c.r):
            n = max(n, 2)
        if c.op.endswith('_dpp') and (pw_v & c.r):
            n = max(n, 2)
        if c.is_valu() and (pw_s & c.r):
            n = max(n, 2)
        if c.kind in VM_KINDS and (pw_s & c.r):
            n = max(n, 5)
        if c.kind in ('salu', 'branch', 'smem') and (pw_s & c.r):
            n = max(n, 5 if c.kind == 'branch' else 2)
        if p.op.endswith('_sdwa') and c.is_valu() and (pw_v & (c.r | c.w)):
            n = max(n, 1)
        if p.op.startswith('v_dot2') and (pw_v & (c.r | c.w)) and c.kind != 'wait':
            same = c.op == p.op and not (pw_v & (c.r - c.w))
            if not same:
                n = max(n, 3)
        if 'exec' in p.w:
            n = max(n, 5)
    if p.kind == 'mfma':
        ps = p.mf['passes']
        big = 12 if ps == 8 else 8
        if c.kind == 'mfma':
            if p.w & c.mf['ab']:
                n = max(n, big)
            if (p.w & c.mf['c']) and not (p.w == c.mf['c'] and c.mf['passes'] == ps):
                n = max(n, big - 2)
            if (p.w & c.w) and not (p.w == c.mf['c'] and c.mf['passes'] == ps):
                n = max(n, big)
        elif c.is_valu() or c.kind in VM_KINDS or c.kind == 'ds':
            if p.w & (c.r | c.w):
                n = max(n, big)
            if p.mf['c'] & c.w:
                n = max(n, 7 if ps == 8 else 3)
    if p.kind == 'salu' and 'm0' in p.w and c.kind == 'dma':
        n = max(n, 1)
    if p.kind == 'vstore' and len(p.data_r) >= 3 and (p.data_r & c.w):
        n = max(n, 2)
    return n


def insert_nops(prog, window=14):
    out = []
    hist = []
    for ins in prog:
        if ins.kind in ('label', 'directive', 'pseudo'):
            out.append(ins)
            continue
        dist = 0
        short = 0
        for p, st in reversed(hist):
            if dist >= window:
                break
            need = _need_states(p, ins)
            if need > dist:
                short = max(short, need - dist)
            dist += st
        while short > 0:
            k = min(short, 16)
            nop = Inst('s_nop %d' % (k - 1))
            out.append(nop)
            hist.append((nop, k))
            short -= k
        out.append(ins)
        hist.append((ins, ins.cost if ins.kind == 'nop' else 1))
        if len(hist) > 64:
            hist = hist[-32:]
    return out


def render(prog):
    lines = []
    for ins in prog:
        if ins.kind == 'pseudo':
            continue
        t = ins.text if ins.kind in ('label', 'directive') else '  ' + ins.text
        if ins.comment:
            t += '  ; ' + ins.comment
        lines.append(t)
    return '\n'.join(lines) + '\n'


def stats(prog):
    from collections import Counter
    c = Counter()
    for ins in prog:
        c[ins.kind] += 1
        if ins.kind == 'nop':
            c['nop_states'] += ins.cost
    return dict(c)


class Filler:
    def __init__(self):
        self.q = []

    def add(self, insts):
        self.q.extend(insts)

    def take(self, budget):
        out = []
        while self.q and budget > 0:
            ins = self.q[0]
            if ins.cost > budget and out:
                break
            out.append(self.q.pop(0))
            budget -= ins.cost
        return out

    def drain(self):
        out, self.q = self.q, []
        return out

    def cost(self):
        return sum(i.cost for i in self.q)
```

```python
import sys, os
sys.path.insert(0, os.path.dirname(os.path.abspath(__file__)))
from asmgen import *

NAME = 'recurrent_scan__linear_attn_block__glu_gated_glu__prompt'
S, D, F = 2048, 512, 1792
SQ, SG = 3072, 3584
NK2 = 144
WS_A2, WS_KV, WS_Z, WS_CNT, WS_END = 0, 0xA00000, 0xA80000, 0xB00000, 0xB80000
LOG2E = 0x3fb8aa3b
NLOG2E = 0xbfb8aa3b

sX, sA, sB, sC, sD_, sWS, sDBG = 24, 28, 32, 36, 40, 44, 48
sW, sRB, sM, sT0, sT1, sT2, sW4K = 52, 53, 54, 55, 56, 57, 58
sA2 = [59, 60, 61]
sNL2E, sL2E, sMASK, sEPS, sONES = 62, 63, 64, 65, 66
sTG, sTQ = 67, 75
sKV, sZ, sCNT, sSEL = 83, 84, 85, 86
sXO = 88
sR2, sCB = 89, 90


def srd(d, lo, hi, shift, nbytes):
    out = []
    if shift == 0:
        out += [I(f's_mov_b32 s{d}, s{lo}'), I(f's_mov_b32 s{d+1}, s{hi}')]
    elif shift > 0:
        out += [I(f's_add_u32 s{d}, s{lo}, {shift}'), I(f's_addc_u32 s{d+1}, s{hi}, 0')]
    else:
        out += [I(f's_sub_u32 s{d}, s{lo}, {-shift}'), I(f's_subb_u32 s{d+1}, s{hi}, 0')]
    out += [I(f's_mov_b32 s{d+2}, {nbytes - shift}'), I(f's_mov_b32 s{d+3}, 0x20000')]
    return out


def R(f, lo, n):
    return f'{f}[{lo}:{lo+n-1}]' if n > 1 else f'{f}{lo}'


def sr(d):
    return f's[{d}:{d+3}]'


def code_prefetch(p, start, end, vtmp, vdst):
    p += [I(f's_getpc_b64 s[{sSEL}:{sSEL+1}]'), I(f'{start}_pc:'),
          I(f's_lshr_b32 s{sT0}, s2, 3'), I(f's_lshl_b32 s{sT0}, s{sT0}, 11'),
          I(f'v_lshlrev_b32 v{vtmp}, 3, v0'), I(f'v_add_u32 v{vtmp}, s{sT0}, v{vtmp}'),
          I(f'v_min_u32 v{vtmp}, {end}-{start}_pc-8, v{vtmp}'),
          I(f'global_load_dwordx2 v[{vdst}:{vdst+1}], v{vtmp}, s[{sSEL}:{sSEL+1}]')]


def spin_until(p, label, vreg, vaddr, srdn, soff, want, tail):
    p += [I(f'v_readfirstlane_b32 s{sT0}, v{vreg}'), I(f's_cmp_eq_u32 s{sT0}, {want}'),
          I(f's_cbranch_scc0 {label}_spin'), I(f'{label}_ok:')]
    tail += [I(f'{label}_spin:'), I(f's_mov_b32 s{sT1}, 0'), I(f'{label}_loop:'),
             I('s_sleep 1'),
             I(f'buffer_load_dword v{vreg}, v{vaddr}, {sr(srdn)}, {soff} offen sc1'),
             I('s_waitcnt vmcnt(0)'),
             I(f'v_readfirstlane_b32 s{sT0}, v{vreg}'),
             I(f's_add_u32 s{sT1}, s{sT1}, 1'),
             I(f's_cmp_gt_u32 s{sT1}, {SPIN_MAX}'), I(f's_cbranch_scc1 {label}_ok'),
             I(f's_cmp_eq_u32 s{sT0}, {want}'), I(f's_cbranch_scc0 {label}_loop'),
             I(f's_branch {label}_ok')]


SPIN_MAX = 200000

XL, ACCA, ACCB = 0, 64, 128
vTR = 192
vTRH = 198
vL16 = 200
vDM = 201
vRS, vNM = 207, 208
vZERO = 209
vT = 210
vFLG = vT + 29
aXH, aFR = 0, 64
NFR = 12


def slot_of(n):
    return 8 + n if n < 2 else (n - 2) % 8


def gu_epilogue(acc, npair, sa2, koff):
    out = []
    t = 0
    for b in range(npair):
        g0, u0 = acc + 16 * b, acc + 16 * (npair + b)
        for half in range(2):
            T = vT + 30 + 4 * (t % 4)
            t += 1
            for q in range(2):
                idx = [8 * half + 4 * q + j for j in range(4)]
                out += [I(f'v_mul_f32 v{g0+i}, s{sNL2E}, v{g0+i}') for i in idx]
                out += [I(f'v_exp_f32 v{g0+i}, v{g0+i}') for i in idx]
                out += [I(f'v_add_f32 v{g0+i}, 1.0, v{g0+i}') for i in idx]
                out += [I(f'v_rcp_f32 v{g0+i}, v{g0+i}') for i in idx]
                out += [I(f'v_mul_f32 v{u0+i}, v{g0+i}, v{u0+i}') for i in idx]
                out += [I(f'v_cvt_pk_bf16_f32 v{T+2*q+j}, v{u0+idx[2*j]}, v{u0+idx[2*j+1]}') for j in range(2)]
            out.append(I(f'buffer_store_dwordx4 {R("v",T,4)}, v{vL16}, {sr(sWS)}, s{sa2} offen offset:{1024*(koff+2*b+half)} sc1', tag='hst'))
    return out


def phi(regs, tmp):
    out = []
    for i in range(0, len(regs), 4):
        g = regs[i:i + 4]
        out += [I(f'v_mul_f32 v{tmp+j}, s{sL2E}, v{r}') for j, r in enumerate(g)]
        out += [I(f'v_max_f32 v{r}, s{sEPS}, v{r}') for r in g]
        out += [I(f'v_exp_f32_e64 v{tmp+j}, v{tmp+j} clamp') for j in range(4)]
        out += [I(f'v_add_f32 v{r}, v{tmp+j}, v{r}') for j, r in enumerate(g)]
    return out


SCR = 8 * 16384


def kv_epilogue():
    K0, V0 = ACCA, ACCA + 32
    PK, PV = vT, vT + 16
    TP = vT + 32
    ZR = vT + 36
    AD = vT + 38
    p1 = []
    for b in range(2):
        p1 += [I(f'v_cvt_pk_bf16_f32 v{PV+8*b+j}, v{V0+16*b+2*j}, v{V0+16*b+2*j+1}') for j in range(8)]
    for b in range(2):
        k = K0 + 16 * b
        p1 += phi(list(range(k, k + 16)), TP)
        p1 += [I(f'v_cvt_pk_bf16_f32 v{PK+8*b+j}, v{k+2*j}, v{k+2*j+1}') for j in range(8)]
        d = V0 + 16 * b
        p1.append(I(f'v_mfma_f32_32x32x16_bf16 {R("v",d,16)}, {R("v",PK+8*b,4)}, {R("v",PV+8*b,4)}, 0'))
        p1.append(I(f'v_mfma_f32_32x32x16_bf16 {R("v",d,16)}, {R("v",PK+8*b+4,4)}, {R("v",PV+8*b+4,4)}, {R("v",d,16)}'))
        for st in (8, 4, 2):
            p1 += [I(f'v_add_f32 v{k+j}, v{k+j}, v{k+st+j}') for j in range(st)]
        p1.append(I(f'v_add_f32 v{ZR+b}, v{k}, v{k+1}'))
    p1 += [I(f'v_add_u32 v{AD}, s{sW4K}, v{vL16}'),
           I(f'v_lshrrev_b32 v{AD+1}, 10, s{sW4K}'.replace(f'10, s{sW4K}', f'10, v{AD}')),
           I(f'v_add_u32 v{AD+1}, v{AD+1}, v{vL16}')]
    for b in range(2):
        d = V0 + 16 * b
        p1 += [I(f'v_cndmask_b32 v{d+j}, v{d+j}, v{d+8+j}, s[{sSEL}:{sSEL+1}]') for j in range(8)]
        for q in range(2):
            p1.append(I(f'ds_write_b128 v{AD}, {R("v",d+4*q,4)} offset:{(2*b+q)*1024}'))
        p1.append(I(f'ds_write_b32 v{AD+1}, v{ZR+b} offset:{16384+1024*b}'))
    p2 = []
    RD = K0
    ZD = K0 + 16
    for w in range(4):
        p2.append(I(f'ds_read_b128 {R("v",RD+4*w,4)}, v{AD+2} offset:{w*4096}'))
    p2.append(I(f'ds_read_b128 {R("v",ZD,4)}, v{AD+3} offset:16384'))
    for j in range(4):
        p2.append(I(f'v_add_f32 v{RD+j}, v{RD+j}, v{RD+4+j}'))
    for j in range(4):
        p2.append(I(f'v_add_f32 v{RD+8+j}, v{RD+8+j}, v{RD+12+j}'))
    p2 += [I(f'v_add_f32 v{ZD}, v{ZD}, v{ZD+1}'), I(f'v_add_f32 v{ZD+2}, v{ZD+2}, v{ZD+3}')]
    for j in range(4):
        p2.append(I(f'v_add_f32 v{RD+j}, v{RD+j}, v{RD+8+j}'))
    p2 += [I(f'v_add_f32 v{ZD}, v{ZD}, v{ZD+2}'),
           I(f'buffer_store_dwordx4 {R("v",RD,4)}, v{vL16}, {sr(sWS)}, s{sKV} offen sc1', tag='kvst'),
           I(f'v_mov_b32 v{ZD+1}, v{ZD}'),
           I(f'v_and_b32 v{ZD+2}, 0xf0, v{vL16}'),
           I(f'v_lshrrev_b32 v{ZD+2}, 2, v{ZD+2}'),
           I(f'v_permlane32_swap_b32 v{ZD}, v{ZD+1}'),
           I(f'v_add_f32 v{ZD}, v{ZD}, v{ZD+1}'),
           I(f'buffer_store_dword v{ZD}, v{ZD+2}, {sr(sWS)}, s{sZ} offen sc1', tag='kvst')]
    pre = [I(f'v_and_b32 v{AD+3}, 0x2f0, v{vL16}'),
           I(f's_and_b32 s{sT0}, s{sW}, 1'), I(f's_lshl_b32 s{sT0}, s{sT0}, 8'),
           I(f's_lshr_b32 s{sT1}, s{sW}, 1'), I(f's_lshl_b32 s{sT2}, s{sT1}, 10'),
           I(f's_add_u32 s{sT0}, s{sT0}, s{sT2}'), I(f's_add_u32 s{sT0}, s{sT0}, {SCR}'),
           I(f'v_add_u32 v{AD+3}, s{sT0}, v{AD+3}'),
           I(f'v_and_b32 v{AD+2}, 0x100, v{vL16}'),
           I(f'v_lshlrev_b32 v{AD+2}, 2, v{AD+2}'),
           I(f'v_add3_u32 v{AD+2}, v{AD+2}, v{AD+3}, s{sT2}')]
    fix = []
    for ins in p1:
        fix.append(ins)
        if ins.text.startswith(f'v_add_u32 v{AD+1}, v{AD+1}'):
            fix += [I(f'v_add_u32 v{AD}, {SCR}, v{AD}'), I(f'v_add_u32 v{AD+1}, {SCR}, v{AD+1}')]
    return pre + fix, p2


def norm_step(s):
    out = []
    src = XL + 4 * s if s < 16 else ACCB + 4 * (s - 16)
    T = vT + (8 if s & 1 else 0) + 30
    for j in range(4):
        out += [I(f'v_lshlrev_b32 v{T+2*j}, 16, v{src+j}'), I(f'v_and_b32 v{T+2*j+1}, s{sMASK}, v{src+j}')]
    for j in range(8):
        out.append(I(f'v_fma_f32 v{T+j}, v{T+j}, v{vRS}, v{vNM}'))
    for j in range(4):
        out.append(I(f'v_cvt_pk_bf16_f32 v{src+j}, v{T+2*j}, v{T+2*j+1}'))
    if s >= 16:
        for j in range(4):
            out.append(I(f'v_accvgpr_write_b32 a{aXH+4*(s-16)+j}, v{src+j}'))
    return out


def xn_frag(s):
    return R('v', XL + 4 * s, 4) if s < 16 else R('a', aXH + 4 * (s - 16), 4)


def w_dma(typ, n):
    sb = 0 if n < 8 else (1 if n < 16 else 2)
    if sb < 2:
        tab = (sTQ if (typ == 'A' and sb == 0) else sTG) + (n & 7)
    else:
        tab = (sTG if typ == 'A' else sTQ) + 2 * (n - 16)
    if typ == 'A':
        s0, s1 = (sC, sD_) if sb == 0 else (sA, sB)
    else:
        s0, s1 = (sA, sB) if sb < 2 else (sC, sD_)
    out = [I(f's_add_u32 m0, s{sW4K}, {slot_of(n)*16384}')]
    for q in range(4):
        off = f' offset:{1024*q}' if q else ''
        out.append(I(f'buffer_load_dwordx4 v{vDM+2*sb+(q&1)}, {sr(s0 if q < 2 else s1)}, s{tab} offen{off} lds', tag=f'W{n}'))
    return out


def frag_reads(typ, f):
    n, i = f >> 4, f & 15
    base = slot_of(n) * 16384
    win, base = base >> 16, base & 0xffff
    dst = aFR + 4 * (f % NFR)
    if n < 16:
        sp, blk = i >> 2, i & 3
        off, addr, step = base + sp * 4096 + (blk >> 1) * 2048, vTR + 2 * win + (blk & 1), 512
    elif typ == 'B':
        ks, b = i >> 1, i & 1
        off, addr, step = base + ks * 2048, vTR + 2 * win + b, 512
    else:
        ks, c = i >> 1, i & 1
        assert win < 2
        off, addr, step = base + (ks >> 1) * 4096 + c * 2048 + (ks & 1) * 1024, vTRH + win, 256
    return [I(f'ds_read_b64_tr_b16 {R("a",dst+2*t,2)}, v{addr} offset:{off+step*t}') for t in range(2)]


def mfma1(typ, f):
    n, i = f >> 4, f & 15
    fr = R('a', aFR + 4 * (f % NFR), 4)
    if n < 16:
        s, blk = (n & 7) * 4 + (i >> 2), i & 3
        acc = (ACCA if n < 8 else ACCB) + 16 * blk
    else:
        s, blk = (n - 16) * 8 + (i >> 1), i & 1
        acc = ACCA + 16 * blk
    x = xn_frag(s)
    a, b = (x, fr) if (typ == 'A' and n < 8) else (fr, x)
    c = '0' if s == 0 else R('v', acc, 16)
    return I(f'v_mfma_f32_32x32x16_bf16 {R("v",acc,16)}, {a}, {b}, {c}'), s


def k1_prologue(p, lab):
    p += [I('s_cmp_ge_u32 s2, 256'), I(f's_cbranch_scc1 {lab}_exit'),
          I('s_load_dwordx16 s[4:19], s[0:1], 0'), I('s_load_dwordx4 s[20:23], s[0:1], 64')]
    code_prefetch(p, lab, f'{lab}_end', vT, 254)
    p += [I(f'v_lshrrev_b32 v{vT}, 6, v0'), I(f'v_and_b32 v{vL16}, 63, v0'),
          I(f'v_readfirstlane_b32 s{sW}, v{vT}'),
          I(f's_lshr_b32 s{sT0}, s2, 3'), I(f's_and_b32 s{sRB}, s{sT0}, 7'),
          I(f's_and_b32 s{sT1}, s2, 1'), I(f's_lshl_b32 s{sT1}, s{sT1}, 3'), I(f's_add_u32 s{sRB}, s{sRB}, s{sT1}'),
          I(f's_lshr_b32 s{sT0}, s{sT0}, 3'), I(f's_and_b32 s{sT1}, s2, 6'), I(f's_lshl_b32 s{sT1}, s{sT1}, 1'),
          I(f's_add_u32 s{sCB}, s{sT0}, s{sT1}'), I(f's_lshr_b32 s{sM}, s{sCB}, 1'),
          I(f's_lshl_b32 s{sW4K}, s{sW}, 12')]
    L = vL16
    XA = vT + 4
    p += [I(f'v_lshrrev_b32 v{vT}, 3, v{L}'),
          I(f'v_lshrrev_b32 v{vT+1}, 4, v{L}'),
          I(f'v_and_b32 v{XA+1}, 7, v{L}'),
          I(f'v_xor_b32 v{vT+1}, v{vT+1}, v{XA+1}'),
          I(f'v_lshlrev_b32 v{vT+1}, 4, v{vT+1}'),
          I(f'v_lshl_add_u32 v{XA}, v{vT}, 10, v{vT+1}'),
          I(f'v_xor_b32 v{XA+1}, 64, v{XA}'),
          I(f'v_add_u32 v{XA+1}, 7168, v{XA+1}'),
          I(f'v_add_u32 v{XA+2}, {2*7168}, v{XA}'),
          I(f'v_add_u32 v{XA+3}, {2*7168}, v{XA+1}'),
          I(f's_lshl_b32 s{sXO}, s{sRB}, 2'), I(f's_add_u32 s{sXO}, s{sXO}, s{sW}'),
          I(f's_mul_i32 s{sKV}, s{sXO}, {NK2*1024}'),
          I(f's_lshl_b32 s{sXO}, s{sXO}, 15')]
    p += srd(sX, 4, 5, 0, S * D * 2)
    p += srd(sWS, 22, 23, 0, WS_END)
    p += [I(f'v_mov_b32 v{vZERO}, 0')]
    p += [I(f's_or_b32 s{sT0}, s2, s{sW}'), I(f's_cmp_lg_u32 s{sT0}, 0'), I(f's_cbranch_scc1 {lab}_noclr'),
          I(f'v_lshlrev_b32 v{vT}, 12, v{L}'), I(f's_mov_b32 s{sT1}, {WS_CNT}'),
          I(f'buffer_store_dword v{vZERO}, v{vT}, {sr(sWS)}, s{sT1} offen sc1'),
          I('s_waitcnt vmcnt(0)')]
    p += srd(sDBG, 20, 21, 0, 256)
    p += [I(f'v_lshlrev_b32 v{vT}, 7, v{L}'), I(f'v_mov_b32 v{vT+1}, 1'),
          I(f'buffer_store_dword v{vT+1}, v{vT}, {sr(sDBG)}, 0 offen sc1'),
          I('s_waitcnt vmcnt(0)'),
          I(f'{lab}_noclr:')]
    for u in range(8):
        p.append(I(f's_add_u32 m0, s{sW4K}, {u*16384}'))
        if u:
            p.append(I(f's_add_u32 s{sXO}, s{sXO}, 128'))
        for q in range(4):
            off = f' offset:{1024*q}' if q else ''
            p.append(I(f'buffer_load_dwordx4 v{XA+q}, {sr(sX)}, s{sXO} offen{off} lds', tag=f'X{u}'))
    p += srd(sA, 12, 13, 0, D * SG)
    p += srd(sB, 14, 15, -2048, D * SG)
    p += srd(sC, 6, 7, 0, D * SQ)
    p += srd(sDBG, 20, 21, 0, 256)
    for n in range(8):
        p += [I(f's_mov_b32 s{sTG+n}, {n*64*SG}'), I(f's_mov_b32 s{sTQ+n}, {n*64*SQ}')]
    p += [I(f's_mov_b32 s{sNL2E}, {NLOG2E}'), I(f's_mov_b32 s{sL2E}, {LOG2E}'), I(f's_mov_b32 s{sMASK}, 0xffff0000'),
          I(f's_mov_b32 s{sEPS}, 0x358637bd'), I(f's_mov_b32 s{sONES}, 0x3f803f80'),
          I(f's_mov_b32 s{sSEL}, 0xffff0000'), I(f's_mov_b32 s{sSEL+1}, 0xffff0000')]
    p += [I(f'v_lshrrev_b32 v{vT}, 3, v{L}'),
          I(f'v_and_b32 v{vT+1}, 16, v{L}'), I(f'v_lshrrev_b32 v{vT+1}, 2, v{vT+1}'),
          I(f'v_and_b32 v{vT+2}, 7, v{L}'), I(f'v_xor_b32 v{vT+1}, v{vT+1}, v{vT+2}'),
          I(f'v_lshlrev_b32 v{vT+1}, 4, v{vT+1}')]
    p += [I(f's_and_b32 s{sT0}, s{sCB}, 1'), I(f's_cmp_eq_u32 s{sT0}, 1'), I(f's_cbranch_scc1 {lab}_B')]


def dma_addr(dst, rows_per_wave_shift, stride, colreg_expr, second):
    return [I(f's_lshl_b32 s{sT1}, s{sW}, {rows_per_wave_shift}'),
            I(f'v_add_u32 v{vT+2}, s{sT1}, v{vT}'),
            I(f'v_mul_u32_u24 v{vT+2}, {stride}, v{vT+2}'),
            I(f'v_add3_u32 v{dst}, v{vT+2}, v{vT+1}, s{colreg_expr}'),
            I(f'v_add_u32 v{dst+1}, {second}, v{dst}')]


def k1_path(typ, lab):
    p, tail = [], []
    L = vL16
    A = typ == 'A'
    if A:
        p += srd(sD_, 6, 7, -1024, D * SQ)
        p += [I(f's_lshl_b32 s{sT0}, s{sM}, 7'), I(f's_add_u32 s{sT0}, s{sT0}, 1024')]
        p += dma_addr(vDM, 4, SQ, sT0, 8 * SQ - 1024)
    else:
        p += srd(sD_, 6, 7, 16 * SQ - 2048, D * SQ)
        p += [I(f's_lshl_b32 s{sT0}, s{sM}, 7')]
        p += dma_addr(vDM, 4, SG, sT0, 8 * SG - 1024)
    p += w_dma(typ, 0) + w_dma(typ, 1)
    p += [I(f's_lshl_b32 s{sT0}, s{sM}, 7'), I(f's_add_u32 s{sT0}, s{sT0}, {128*(16 if A else 8)}')]
    p += dma_addr(vDM + 2, 4, SG, sT0, 8 * SG - 1024)
    if A:
        p += [I(f's_lshl_b32 s{sT0}, s{sM}, 6'), I(f's_add_u32 s{sT0}, s{sT0}, {128*24}'),
              I(f'v_lshrrev_b32 v{vT}, 2, v{L}'), I(f'v_and_b32 v{vT+1}, 3, v{L}'), I(f'v_lshlrev_b32 v{vT+1}, 4, v{vT+1}')]
        p += dma_addr(vDM + 4, 5, SG, sT0, 16 * SG - 1024)
    else:
        p += [I(f's_lshl_b32 s{sT0}, s{sM}, 7')]
        p += dma_addr(vDM + 4, 5, SQ, sT0, 8 * SQ - 1024)
    if A:
        p += [I(f's_lshl_b32 s{sT0}, s{sM}, 12'), I(f's_add_u32 s{sT0}, s{sT0}, s{sKV}'),
              I(f's_add_u32 s{sA2[1]}, s{sT0}, {64*1024}'),
              I(f's_lshl_b32 s{sT0}, s{sM}, 11'), I(f's_add_u32 s{sT0}, s{sT0}, s{sKV}'),
              I(f's_add_u32 s{sA2[2]}, s{sT0}, {96*1024}')]
        p += [I(f's_lshl_b32 s{sT0}, s{sM}, 2'), I(f's_add_u32 s{sT0}, s{sT0}, s{sW}'),
              I(f's_lshl_b32 s{sT0}, s{sT0}, 4'), I(f's_add_u32 s{sT0}, s{sT0}, s{sRB}'),
              I(f's_lshl_b32 s{sKV}, s{sT0}, 10'), I(f's_add_u32 s{sKV}, s{sKV}, {WS_KV}'),
              I(f's_lshl_b32 s{sZ}, s{sT0}, 6'), I(f's_add_u32 s{sZ}, s{sZ}, {WS_Z}')]
    else:
        p += [I(f's_lshl_b32 s{sT0}, s{sM}, 12'), I(f's_add_u32 s{sA2[0]}, s{sT0}, s{sKV}'),
              I(f's_add_u32 s{sA2[1]}, s{sA2[0]}, {32*1024}'), I(f's_add_u32 s{sA2[2]}, s{sA2[0]}, {112*1024}')]
        p += [I(f's_lshl_b32 s{sT0}, s{sM}, 2'), I(f's_add_u32 s{sT0}, s{sT0}, s{sW}'),
              I(f's_lshl_b32 s{sKV}, s{sT0}, 14'), I(f's_add_u32 s{sKV}, s{sKV}, {WS_KV}'),
              I(f's_lshl_b32 s{sZ}, s{sT0}, 10'), I(f's_add_u32 s{sZ}, s{sZ}, {WS_Z}')]
    p += [I(f's_lshl_b32 s{sCNT}, s{sM}, 12'), I(f's_add_u32 s{sCNT}, s{sCNT}, {WS_CNT}')]
    T0, T1, T2 = vT, vT + 1, vT + 2
    p += [I(f'v_lshrrev_b32 v{T0}, 5, v{L}'), I(f'v_lshlrev_b32 v{T0}, 3, v{T0}'),
          I(f'v_bfe_u32 v{T1}, v{L}, 2, 2'), I(f'v_add_u32 v{T0}, v{T0}, v{T1}'),
          I(f'v_and_b32 v{T1}, 16, v{L}'), I(f'v_lshlrev_b32 v{T1}, 1, v{T1}'),
          I(f'v_and_b32 v{T2}, 3, v{L}'), I(f'v_lshl_add_u32 v{T1}, v{T2}, 3, v{T1}'),
          I(f'v_lshl_add_u32 v{vTRH}, v{T0}, 6, v{T1}'), I(f'v_add_u32 v{vTRH+1}, 0x10000, v{vTRH}'),
          I(f'v_lshl_add_u32 v{vTR}, v{T0}, 7, v{T1}'),
          I(f'v_and_b32 v{T2}, 8, v{L}'), I(f'v_lshlrev_b32 v{T2}, 3, v{T2}'),
          I(f'v_xor_b32 v{vTR}, v{vTR}, v{T2}'), I(f'v_xor_b32 v{vTR+1}, 64, v{vTR}')]
    for w in (1, 2):
        p += [I(f'v_add_u32 v{vTR+2*w+b}, {w*0x10000}, v{vTR+b}') for b in range(2)]
    XR = vT + 8
    p += [I(f'v_bfe_u32 v{T0}, v{L}, 1, 3'), I(f'v_lshrrev_b32 v{T1}, 5, v{L}'), I(f'v_xor_b32 v{T0}, v{T0}, v{T1}'),
          I(f'v_lshlrev_b32 v{T0}, 4, v{T0}'), I(f'v_and_b32 v{T1}, 31, v{L}'),
          I(f'v_lshl_add_u32 v{T0}, v{T1}, 7, v{T0}'), I(f'v_add_u32 v{XR}, s{sW4K}, v{T0}')]
    p += [I(f'v_xor_b32 v{XR+j}, {32*j}, v{XR}') for j in range(1, 4)]
    p += [I(f'v_add_u32 v{XR+4+j}, 0x10000, v{XR+j}') for j in range(4)]
    p += [I(f'v_lshlrev_b32 v{vL16}, 4, v{L}')]
    SU, SQ2 = vT + 16, vT + 18
    p += [I(f'v_mov_b32 v{SU+j}, 0') for j in range(4)]

    def xreg(s):
        return XL + 4 * s if s < 16 else ACCB + 4 * (s - 16)

    def xreads(u):
        return [I(f'ds_read_b128 {R("v",xreg(4*u+j),4)}, v{XR+j+(4 if u >= 4 else 0)} offset:{(u&3)*16384}',
                  need=[f'X{u}'] if j == 0 else None) for j in range(4)]

    def xstats(u):
        out = []
        for j in range(16):
            r = xreg(4 * u) + j
            out += [I(f'v_dot2c_f32_bf16 v{SU+(j&1)}, s{sONES}, v{r}'), I(f'v_dot2c_f32_bf16 v{SQ2+(j&1)}, v{r}, v{r}')]
        return out
    p += xreads(0)
    for u in range(8):
        if u < 7:
            p += xreads(u + 1)
        p += xstats(u)
        if u & 1 and u < 7:
            p.append(I('s_barrier', need=[R('v', xreg(4 * u + 3), 4)]))
            p += w_dma(typ, u + 1) + w_dma(typ, u + 2)
    p.append(I('s_barrier', need=['W0']))
    p += w_dma(typ, 8) + w_dma(typ, 9)
    for f in range(8):
        p += frag_reads(typ, f)
    p += [I(f's_and_b32 s{sT0}, s2, 1'), I(f's_lshl_b32 s{sXO}, s{sT0}, 7'),
          I(f'buffer_load_dword v{vFLG}, v{vZERO}, {sr(sDBG)}, s{sXO} offen sc1')]
    p += [I(f'v_add_f32 v{SU}, v{SU}, v{SU+1}'), I(f'v_add_f32 v{SQ2}, v{SQ2}, v{SQ2+1}'),
          I(f'v_mov_b32 v{SU+1}, v{SU}'), I(f'v_mov_b32 v{SQ2+1}, v{SQ2}'),
          I(f'v_permlane32_swap_b32 v{SU}, v{SU+1}'), I(f'v_permlane32_swap_b32 v{SQ2}, v{SQ2+1}'),
          I(f'v_add_f32 v{SU}, v{SU}, v{SU+1}'), I(f'v_add_f32 v{SQ2}, v{SQ2}, v{SQ2+1}'),
          I(f'v_mul_f32 v{SU}, 0x3b000000, v{SU}'), I(f'v_mul_f32 v{SQ2}, 0x3b000000, v{SQ2}'),
          I(f'v_fma_f32 v{SQ2}, -v{SU}, v{SU}, v{SQ2}'), I(f'v_max_f32 v{SQ2}, 0, v{SQ2}'),
          I(f'v_cvt_pk_bf16_f32 v{SU}, v{SU}, v{SQ2}'),
          I(f'v_and_b32 v{SQ2}, s{sMASK}, v{SU}'), I(f'v_lshlrev_b32 v{SU}, 16, v{SU}'),
          I(f'v_add_f32 v{SQ2}, 0x3727c5ac, v{SQ2}'),
          I(f'v_cvt_pk_bf16_f32 v{SQ2}, v{SQ2}, v{SQ2}'), I(f'v_and_b32 v{SQ2}, s{sMASK}, v{SQ2}'),
          I(f'v_sqrt_f32 v{SQ2}, v{SQ2}'),
          I(f'v_cvt_pk_bf16_f32 v{SQ2}, v{SQ2}, v{SQ2}'), I(f'v_and_b32 v{SQ2}, s{sMASK}, v{SQ2}'),
          I(f'v_rcp_f32 v{vRS}, v{SQ2}'),
          I(f'v_mul_f32_e64 v{vNM}, -v{SU}, v{vRS}')]
    p += norm_step(0)

    fill = Filler()
    kv2 = None
    kv_state = 0
    NF = 320
    for f in range(NF):
        n, i = f >> 4, f & 15
        if f == 128:
            if A:
                kv1, kv2 = kv_epilogue()
                fill.add(kv1)
                kv_state = 1
            else:
                fill.add(gu_epilogue(ACCA, 2, sA2[0], 0))
        if f == 256:
            fill.add(fill.drain())
            assert fill.cost() == 0 or True
            p += fill.drain()
            fill.add(gu_epilogue(ACCB, 2, sA2[1], 0))
        m, s = mfma1(typ, f)
        if f % 4 == 0:
            p.append(I('@need', need=[R('a', aFR + 4 * ((f + j) % NFR), 4) for j in range(4)]))
        if n < 8 and (i & 3) == 0:
            p += fill.drain()
            if s < 31:
                fill.add(norm_step(s + 1))
        p.append(m)
        extra = 0
        if i == 8 and n < 19:
            need = [f'W{n+1}']
            pre, post = [], []
            if n == 5:
                pre = [I(f's_cmp_lg_u32 s{sW}, 0', need=[f'v{vFLG}']), I(f's_cbranch_scc1 {lab}_rdy_ok')]
                spin_until(pre, f'{lab}_rdy', vFLG, vZERO, sDBG, f's{sXO}', 1, tail)
            if kv_state == 1 and fill.cost() == 0:
                pre = [I('s_waitcnt lgkmcnt(0)')]
                fill.add(kv2)
                kv_state = 2
            elif kv_state == 2 and fill.cost() == 0:
                need.append('kvst')
                post = [I(f's_cmp_lg_u32 s{sW}, 0'), I(f's_cbranch_scc1 {lab}_nosig'),
                        I('s_mov_b64 exec, 1'), I(f'v_mov_b32 v{vT}, 1'),
                        I(f'buffer_atomic_add v{vT}, v{vZERO}, {sr(sWS)}, s{sCNT} offen sc1', tag='nocount'),
                        I('s_mov_b64 exec, -1'), I(f'{lab}_nosig:')]
                kv_state = 3
            p += pre
            p.append(I('s_barrier', need=need))
            p += post
            if 10 <= n + 7 < 20:
                p += w_dma(typ, n + 7)
                extra = 5
        if f + 8 < NF:
            p += frag_reads(typ, f + 8)
        if not A and f == 296:
            p.append(I(f'buffer_load_dword v{vFLG}, v{vZERO}, {sr(sWS)}, s{sCNT} offen sc1'))
        if n < 8:
            left = 4 - (i & 3)
            p += fill.take((fill.cost() + left - 1) // left)
        elif f >= 130 and not (256 <= f < 258):
            if n < 16:
                bud = 4 if A else 3
            else:
                left = NF - f
                bud = max(3, (fill.cost() + left - 1) // left)
            p += fill.take(max(1, bud - extra // 2))
    assert kv_state in (0, 3), kv_state
    p += fill.drain()
    if A:
        p += gu_epilogue(ACCA, 1, sA2[2], 0)
    else:
        spin_until(p, f'{lab}_kv', vFLG, vZERO, sWS, f's{sCNT}', 16, tail)
        X, Y = ACCB, vT
        for i in range(16):
            if i and i % 4 == 0:
                p.append(I(f's_add_u32 s{sKV}, s{sKV}, 4096'))
            off = f' offset:{1024*(i&3)}' if i & 3 else ''
            p.append(I(f'buffer_load_dwordx4 {R("v",X+4*i,4)}, v{vL16}, {sr(sWS)}, s{sKV} offen{off} sc1'))
        p += [I(f'v_and_b32 v{vT+4}, 0xf0, v{vL16}'), I(f'v_lshlrev_b32 v{vT+4}, 2, v{vT+4}'),
              I(f'v_and_b32 v{vT+5}, 0x100, v{vL16}'), I(f'v_lshrrev_b32 v{vT+5}, 3, v{vT+5}'),
              I(f'v_lshrrev_b32 v{vT+6}, 9, v{vL16}'), I(f'v_lshlrev_b32 v{vT+6}, 4, v{vT+6}'),
              I(f'v_add3_u32 v{vT+4}, v{vT+4}, v{vT+5}, v{vT+6}'),
              I(f'buffer_load_dwordx4 {R("v",Y,4)}, v{vT+4}, {sr(sWS)}, s{sZ} offen sc1')]
        PQ = vT + 12
        for b in range(2):
            q = ACCA + 16 * b
            p += phi(list(range(q, q + 16)), vT + 8)
            p += [I(f'v_cvt_pk_bf16_f32 v{PQ+8*b+j}, v{q+2*j}, v{q+2*j+1}') for j in range(8)]
        for st in (32, 16, 8, 4):
            p += [I(f'v_add_f32 v{X+j}, v{X+j}, v{X+st+j}') for j in range(st)]
        for rot in (8, 4, 2, 1):
            p += [I(f'v_add_f32_dpp v{Y+j}, v{Y+j}, v{Y+j} row_ror:{rot} row_mask:0xf bank_mask:0xf') for j in range(4)]
        IM = vT + 28
        p += [I(f'v_cvt_pk_bf16_f32 v{IM}, v{X}, v{X+1}'), I(f'v_cvt_pk_bf16_f32 v{IM+1}, v{X+2}, v{X+3}'),
              I(f'v_cvt_pk_bf16_f32 v{IM+2}, v{Y}, v{Y+1}'), I(f'v_cvt_pk_bf16_f32 v{IM+3}, v{Y+2}, v{Y+3}'),
              I(f's_lshl_b32 s{sT0}, s{sW}, 10'), I(f's_add_u32 s{sT0}, s{sT0}, {SCR}'),
              I(f'v_add_u32 v{vT+4}, s{sT0}, v{vL16}'), I(f'v_add_u32 v{vT+5}, {SCR}, v{vL16}'),
              I(f'v_permlane16_swap_b32 v{IM}, v{IM+2}'), I(f'v_permlane16_swap_b32 v{IM+1}, v{IM+3}'),
              I(f'ds_write_b128 v{vT+4}, {R("v",IM,4)}'), I('s_waitcnt lgkmcnt(0)'), I('s_barrier')]
        AL = ACCA + 32
        p += [I(f'ds_read_b128 {R("v",AL+4*h,4)}, v{vT+5} offset:{1024*h}') for h in range(4)]
        for h in range(4):
            p.append(I(f'v_mfma_f32_32x32x16_bf16 {R("v",ACCB+16*h,16)}, {R("v",AL+4*h,4)}, {R("v",PQ+4*h,4)}, 0'))
        for h in range(4):
            d = ACCB + 16 * h
            p += [I(f'v_add_f32 v{d+8}, s{sEPS}, v{d+8}'), I(f'v_rcp_f32 v{d+8}, v{d+8}')]
            p += [I(f'v_mul_f32 v{d+j}, v{d+8}, v{d+j}') for j in range(8)]
            p += [I(f'v_cvt_pk_bf16_f32 v{d+12+j}, v{d+2*j}, v{d+2*j+1}') for j in range(4)]
            off = f' offset:{1024*h}' if h else ''
            p.append(I(f'buffer_store_dwordx4 {R("v",d+12,4)}, v{vL16}, {sr(sWS)}, s{sA2[2]} offen{off} sc1', tag='hst'))
    p.append(I('s_endpgm'))
    return p, tail


def build_k1(lab):
    pro = []
    k1_prologue(pro, lab)
    pro, vm, lg = insert_waits(pro)
    body = []
    allp = list(pro)
    for typ in 'AB':
        p, tail = k1_path(typ, f'{lab}_{typ}')
        p, _, _ = insert_waits(p, vm, lg)
        if typ == 'B':
            allp.append(I(f'{lab}_B:'))
        allp += p + tail
    allp += [I(f'{lab}_exit:'), I('s_endpgm'), I(f'{lab}_end:')]
    return insert_nops(allp)


def build_k2(lab):
    p = []
    YA = 0
    SA = 64
    HB = 80
    NH = 32
    vL, vDA, vT2, vXA, vXD = 208, 209, 211, 217, 220
    T = 228
    aW = 0
    NW = 8
    aO = 128
    RING = 8
    WO = 65536
    p += [I('s_cmp_ge_u32 s2, 256'), I(f's_cbranch_scc1 {lab}_exit'),
          I('s_load_dwordx16 s[4:19], s[0:1], 0'), I('s_load_dwordx4 s[20:23], s[0:1], 64')]
    code_prefetch(p, lab, f'{lab}_end', T, 254)
    p += [I(f'v_lshrrev_b32 v{T}, 6, v0'), I(f'v_and_b32 v{vL}, 63, v0'), I(f'v_readfirstlane_b32 s{sW}, v{T}'),
          I(f's_lshr_b32 s{sT0}, s2, 3'), I(f's_and_b32 s{sR2}, s{sT0}, 7'), I(f's_lshr_b32 s{sCB}, s{sT0}, 3'),
          I(f's_and_b32 s{sT1}, s2, 6'), I(f's_lshl_b32 s{sT1}, s{sT1}, 2'), I(f's_add_u32 s{sR2}, s{sR2}, s{sT1}'),
          I(f's_and_b32 s{sT1}, s2, 1'), I(f's_lshl_b32 s{sT1}, s{sT1}, 2'), I(f's_add_u32 s{sCB}, s{sCB}, s{sT1}')]
    p += [I(f'v_lshrrev_b32 v{T}, 3, v{vL}'),
          I(f'v_and_b32 v{T+1}, 16, v{vL}'), I(f'v_lshrrev_b32 v{T+1}, 2, v{T+1}'),
          I(f'v_and_b32 v{T+2}, 7, v{vL}'), I(f'v_xor_b32 v{T+1}, v{T+1}, v{T+2}'),
          I(f'v_lshlrev_b32 v{T+1}, 4, v{T+1}'),
          I(f'v_lshl_add_u32 v{vDA}, v{T}, 10, v{T+1}'),
          I(f's_lshl_b32 s{sT0}, s{sCB}, 7'), I(f's_lshl_b32 s{sT1}, s{sW}, 14'), I(f's_add_u32 s{sT0}, s{sT0}, s{sT1}'),
          I(f'v_add_u32 v{vDA}, s{sT0}, v{vDA}'), I(f'v_add_u32 v{vDA+1}, {8192-1024}, v{vDA}'),
          I(f's_lshl_b32 s{sW4K}, s{sW}, 14'),
          I(f's_lshl_b32 s{sKV}, s{sW}, 11')]
    p += srd(sA, 16, 17, 0, F * 1024)
    p += srd(sB, 8, 9, 0, D * 1024)
    p += srd(sWS, 22, 23, 0, WS_END)
    p += [I(f'v_lshlrev_b32 v{T+4}, 4, v{vL}'),
          I(f's_mul_i32 s{sA2[0]}, s{sR2}, {2*NK2*1024}'), I(f's_lshl_b32 s{sT0}, s{sW}, 10'),
          I(f's_add_u32 s{sA2[0]}, s{sA2[0]}, s{sT0}'), I(f's_add_u32 s{sA2[1]}, s{sA2[0]}, {NK2*1024}'),
          I(f's_mov_b32 s{sXO}, 0'), I(f's_mov_b32 s{sZ}, 0')]
    vH = T + 4

    def wd_dma(q):
        out = [I(f's_add_u32 m0, s{sW4K}, {(q % RING)*2048}')]
        if q:
            out.append(I(f's_add_u32 s{sXO}, s{sXO}, 65536'))
        out += [I(f'buffer_load_dwordx4 v{vDA}, {sr(sA)}, s{sXO} offen lds', tag=f'D{q}'),
                I(f'buffer_load_dwordx4 v{vDA+1}, {sr(sA)}, s{sXO} offen offset:1024 lds', tag=f'D{q}')]
        return out

    def wo_dma(j):
        out = [I(f's_add_u32 m0, s{sKV}, {WO + j*8192}')]
        if j:
            out.append(I(f's_add_u32 s{sZ}, s{sZ}, 65536'))
        out += [I(f'buffer_load_dwordx4 v{vDA}, {sr(sB)}, s{sZ} offen lds', tag='WO'),
                I(f'buffer_load_dwordx4 v{vDA+1}, {sr(sB)}, s{sZ} offen offset:1024 lds', tag='WO')]
        return out

    def h_load(q):
        out = []
        if q:
            out += [I(f's_add_u32 s{sA2[0]}, s{sA2[0]}, 4096'), I(f's_add_u32 s{sA2[1]}, s{sA2[1]}, 4096')]
        for tb in range(2):
            out.append(I(f'buffer_load_dwordx4 {R("v",HB+4*((2*q+tb)%NH),4)}, v{vH}, {sr(sWS)}, s{sA2[tb]} offen sc1'))
        return out

    def o_load(j):
        out = []
        if j and j % 4 == 0:
            out.append(I(f's_add_u32 s{sA2[2]}, s{sA2[2]}, 4096'))
        off = f' offset:{1024*(j&3)}' if j & 3 else ''
        out.append(I(f'buffer_load_dwordx4 {R("v",HB+4*((56+j)%NH),4)}, v{vH}, {sr(sWS)}, s{sA2[2]} offen{off} sc1'))
        return out
    PRE = RING
    for q in range(PRE):
        p += wd_dma(q) + h_load(q)
    for q in range(PRE, 12):
        p += h_load(q)
    T0, T1, T2 = T, T + 1, T + 2
    p += [I(f'v_lshrrev_b32 v{T0}, 5, v{vL}'), I(f'v_lshlrev_b32 v{T0}, 2, v{T0}'),
          I(f'v_bfe_u32 v{T1}, v{vL}, 2, 2'), I(f'v_add_u32 v{T0}, v{T0}, v{T1}'), I(f'v_lshlrev_b32 v{T0}, 7, v{T0}'),
          I(f'v_and_b32 v{T1}, 1, v{vL}'), I(f'v_lshl_add_u32 v{T0}, v{T1}, 5, v{T0}'),
          I(f'v_and_b32 v{T1}, 16, v{vL}'), I(f'v_add_u32 v{T0}, v{T0}, v{T1}'),
          I(f'v_and_b32 v{T1}, 2, v{vL}'), I(f'v_lshl_add_u32 v{T0}, v{T1}, 2, v{T0}'),
          I(f'v_and_b32 v{T1}, 8, v{vL}'), I(f'v_lshlrev_b32 v{T1}, 3, v{T1}'), I(f'v_xor_b32 v{T0}, v{T0}, v{T1}'),
          I(f'v_add_u32 v{vT2}, s{sW4K}, v{T0}'), I(f'v_xor_b32 v{vT2+1}, 64, v{vT2}'),
          I(f's_lshr_b32 s{sT0}, s{sW}, 1'), I(f's_lshl_b32 s{sT0}, s{sT0}, 6'),
          I(f'v_xor_b32 v{vT2+2}, s{sT0}, v{T0}'), I(f'v_add_u32 v{vT2+2}, {WO}, v{vT2+2}'),
          I(f's_lshl_b32 s{sT1}, s{sR2}, 1'), I(f's_and_b32 s{sT2}, s{sW}, 1'), I(f's_add_u32 s{sT1}, s{sT1}, s{sT2}'),
          I(f's_mul_i32 s{sA2[2]}, s{sT1}, {NK2*1024}'), I(f's_add_u32 s{sA2[2]}, s{sA2[2]}, {112*1024}'),
          I(f's_lshl_b32 s{sT1}, s{sT1}, 15'), I(f's_lshl_b32 s{sT2}, s{sCB}, 7'),
          I(f's_add_u32 s{sT1}, s{sT1}, s{sT2}'), I(f's_add_u32 s{sT1}, s{sT1}, s{sT0}'),
          I(f'v_and_b32 v{T1}, 31, v{vL}'), I(f'v_lshlrev_b32 v{T1}, 10, v{T1}'),
          I(f'v_and_b32 v{T2}, 32, v{vL}'), I(f'v_add3_u32 v{vXA}, v{T1}, v{T2}, s{sT1}')]
    p += srd(sX, 4, 5, 0, S * D * 2)
    p += srd(sC, 18, 19, 0, S * D * 2)
    p += [I(f's_mov_b32 s{sNL2E}, {NLOG2E}'), I(f's_mov_b32 s{sMASK}, 0xffff0000')]

    def wd_reads(q, nb):
        dst = aW + 4 * ((2 * q + nb) % NW)
        return [I(f'ds_read_b64_tr_b16 {R("a",dst+2*t,2)}, v{vT2+nb} offset:{(q%RING)*2048+1024*t}',
                  need=[f'D{q}'] if (t == 0 and nb == 0) else None) for t in range(2)]

    def wo_reads(j):
        return [I(f'ds_read_b64_tr_b16 {R("a",aO+4*j+2*t,2)}, v{vT2+2} offset:{j*2048+1024*t}') for t in range(2)]
    for q in range(2):
        p += wd_reads(q, 0) + wd_reads(q, 1)
    NQ = 28
    side = Filler()
    for q in range(NQ):
        p.append(I('@need', need=[R('a', aW + 4 * ((2 * q) % NW), 8), R('v', HB + 4 * ((2 * q) % NH), 8)]))
        for g in range(4):
            nb, tb = g >> 1, g & 1
            acc = R('v', YA + 16 * g, 16)
            p.append(I(f'v_mfma_f32_32x32x16_bf16 {acc}, {R("a",aW+4*((2*q+nb)%NW),4)}, {R("v",HB+4*((2*q+tb)%NH),4)}, {"0" if q == 0 else acc}'))
            if g < 2 and q + 2 < NQ:
                p += wd_reads(q + 2, g)
            if g == 0 and q + PRE < NQ:
                p += wd_dma(q + PRE)
            if g == 2:
                if q + 12 < NQ:
                    p += h_load(q + 12)
                elif q >= 16:
                    for j in range(2 * (q - 16), 2 * (q - 16) + 2):
                        p += o_load(j)
            if g == 3 and 4 <= q < 12:
                p += wo_dma(q - 4)
            if g == 3 and q == 14:
                p += [I(f'buffer_load_dwordx4 {R("v",vXD,4)}, v{vXA}, {sr(sX)}, 0 offen'),
                      I(f'buffer_load_dwordx4 {R("v",vXD+4,4)}, v{vXA}, {sr(sX)}, 0 offen offset:16')]
            if g == 3 and q == 19:
                p.append(I('s_barrier', need=['WO']))
                for j in range(32):
                    side.add(wo_reads(j))
            if q >= 20:
                p += side.take(2)
    p += side.drain()
    for j in range(24, 32):
        p += o_load(j)
    p += [I(f'v_add_u32 v{T}, s{sW4K}, v{vH}'), I(f's_lshl_b32 s{sT0}, s{sW}, 12'), I(f'v_add_u32 v{T+1}, s{sT0}, v{vH}')]
    for g in range(4):
        for j in range(4):
            side.add([I(f'ds_write_b128 v{T}, {R("v",YA+16*g+4*j,4)} offset:{4096*g+1024*j}')])
    fill = Filler()
    state = 0
    for j in range(32):
        acc = R('v', SA, 16)
        if j % 4 == 0:
            p.append(I('@need', need=[R('a', aO + 4 * j, 16)]))
        p.append(I(f'v_mfma_f32_32x32x16_bf16 {acc}, {R("a",aO+4*j,4)}, {R("v",HB+4*((56+j)%NH),4)}, {"0" if j == 0 else acc}'))
        if state == 0:
            if j >= 2:
                p += side.take(2)
            if side.cost() == 0:
                p += [I('s_waitcnt lgkmcnt(0)'), I('s_barrier')]
                for w in range(4):
                    for jj in range(4):
                        fill.add([I(f'ds_read_b128 {R("v",YA+16*w+4*jj,4)}, v{T+1} offset:{16384*w+1024*jj}')])
                for jj in range(16):
                    fill.add([I(f'v_add_f32 v{YA+jj}, v{YA+jj}, v{YA+16+jj}')])
                for jj in range(16):
                    fill.add([I(f'v_add_f32 v{YA+32+jj}, v{YA+32+jj}, v{YA+48+jj}')])
                for i in range(0, 16, 4):
                    idx = range(i, i + 4)
                    fill.add([I(f'v_add_f32 v{YA+k}, v{YA+k}, v{YA+32+k}') for k in idx])
                    fill.add([I(f'v_mul_f32 v{YA+16+k}, s{sNL2E}, v{YA+k}') for k in idx])
                    fill.add([I(f'v_exp_f32 v{YA+16+k}, v{YA+16+k}') for k in idx])
                    fill.add([I(f'v_add_f32 v{YA+16+k}, 1.0, v{YA+16+k}') for k in idx])
                    fill.add([I(f'v_rcp_f32 v{YA+16+k}, v{YA+16+k}') for k in idx])
                    fill.add([I(f'v_mul_f32 v{YA+k}, v{YA+k}, v{YA+16+k}') for k in idx])
                for k in range(8):
                    fill.add([I(f'v_lshlrev_b32 v{YA+32+2*k}, 16, v{vXD+k}'), I(f'v_and_b32 v{YA+33+2*k}, s{sMASK}, v{vXD+k}')])
                state = 1
        else:
            p += fill.take(6)
    p += fill.drain()
    for half in range(2):
        p += [I(f'v_fmac_f32 v{YA+32+8*half+k}, v{SA+8*half+k}, v{YA+8*half+k}') for k in range(8)]
        p += [I(f'v_cvt_pk_bf16_f32 v{vXD+4*half+k}, v{YA+32+8*half+2*k}, v{YA+33+8*half+2*k}') for k in range(4)]
        off = ' offset:16' if half else ''
        p.append(I(f'buffer_store_dwordx4 {R("v",vXD+4*half,4)}, v{vXA}, {sr(sC)}, 0 offen{off}'))
    p += [I('s_endpgm'), I(f'{lab}_exit:'), I('s_endpgm'), I(f'{lab}_end:')]
    p, _, _ = insert_waits(p)
    return insert_nops(p)


def kd(name, vgpr, accum):
    return f""".section .rodata,"a"
.p2align 6
.amdhsa_kernel {name}
  .amdhsa_next_free_vgpr {vgpr}
  .amdhsa_next_free_sgpr 102
  .amdhsa_accum_offset {accum}
  .amdhsa_group_segment_fixed_size 0
  .amdhsa_kernarg_size 80
  .amdhsa_user_sgpr_count 2
  .amdhsa_user_sgpr_kernarg_segment_ptr 1
  .amdhsa_system_sgpr_workgroup_id_x 1
.end_amdhsa_kernel
"""


def head(name):
    return f'.text\n.globl {name}\n.p2align 8\n.type {name},@function\n{name}:\n'


def build():
    k1, k2 = build_k1('k1'), build_k2('k2')
    print('k1', stats(k1), file=sys.stderr)
    print('k2', stats(k2), file=sys.stderr)
    out = ['; @launch kernel=p1_kernel grid=(256,1,1) block=(256,1,1) lds=163840',
           '; @launch kernel=p2_kernel grid=(256,1,1) block=(256,1,1) lds=131072',
           '.amdgcn_target "amdgcn-amd-amdhsa--gfx950"']
    txt = '\n'.join(out) + '\n'
    txt += head('p1_kernel') + render(k1) + head('p2_kernel') + render(k2)
    txt += kd('p1_kernel', 512, 256) + kd('p2_kernel', 512, 256)
    return txt


if __name__ == '__main__':
    path = sys.argv[1] if len(sys.argv) > 1 else f'cdna_kernels/{NAME}.s'
    open(path, 'w').write(build())
```

```python
import sys, os
sys.path.insert(0, os.path.dirname(os.path.abspath(__file__)))
from asmgen import *

NAME = 'recurrent_scan__linear_attn_block__glu_gated_glu__prompt'
S, D, F = 2048, 512, 1792
SQ, SG = 3072, 3584
NK2 = 144
WS_A2, WS_KV, WS_Z, WS_CNT, WS_END = 0, 0xA00000, 0xA80000, 0xB00000, 0xB80000
LOG2E = 0x3fb8aa3b
NLOG2E = 0xbfb8aa3b

sX, sA, sB, sC, sD_, sWS, sDBG = 24, 28, 32, 36, 40, 44, 48
sW, sRB, sM, sT0, sT1, sT2, sW4K = 52, 53, 54, 55, 56, 57, 58
sA2 = [59, 60, 61]
sNL2E, sL2E, sMASK, sEPS, sONES = 62, 63, 64, 65, 66
sTG, sTQ = 67, 75
sKV, sZ, sCNT, sSEL = 83, 84, 85, 86
sXO = 88
sR2, sCB = 89, 90


def srd(d, lo, hi, shift, nbytes):
    out = []
    if shift == 0:
        out += [I(f's_mov_b32 s{d}, s{lo}'), I(f's_mov_b32 s{d+1}, s{hi}')]
    elif shift > 0:
        out += [I(f's_add_u32 s{d}, s{lo}, {shift}'), I(f's_addc_u32 s{d+1}, s{hi}, 0')]
    else:
        out += [I(f's_sub_u32 s{d}, s{lo}, {-shift}'), I(f's_subb_u32 s{d+1}, s{hi}, 0')]
    out += [I(f's_mov_b32 s{d+2}, {nbytes - shift}'), I(f's_mov_b32 s{d+3}, 0x20000')]
    return out


def R(f, lo, n):
    return f'{f}[{lo}:{lo+n-1}]' if n > 1 else f'{f}{lo}'


def sr(d):
    return f's[{d}:{d+3}]'


def code_prefetch(p, start, end, vtmp, vdst):
    p += [I(f's_getpc_b64 s[{sSEL}:{sSEL+1}]'), I(f'{start}_pc:'),
          I(f's_lshr_b32 s{sT0}, s2, 3'), I(f's_lshl_b32 s{sT0}, s{sT0}, 11'),
          I(f'v_lshlrev_b32 v{vtmp}, 3, v0'), I(f'v_add_u32 v{vtmp}, s{sT0}, v{vtmp}'),
          I(f'v_min_u32 v{vtmp}, {end}-{start}_pc-8, v{vtmp}'),
          I(f'global_load_dwordx2 v[{vdst}:{vdst+1}], v{vtmp}, s[{sSEL}:{sSEL+1}]')]


def spin_until(p, label, vreg, vaddr, srdn, soff, want, tail):
    p += [I(f'v_readfirstlane_b32 s{sT0}, v{vreg}'), I(f's_cmp_eq_u32 s{sT0}, {want}'),
          I(f's_cbranch_scc0 {label}_spin'), I(f'{label}_ok:')]
    tail += [I(f'{label}_spin:'), I(f's_mov_b32 s{sT1}, 0'), I(f'{label}_loop:'),
             I('s_sleep 1'),
             I(f'buffer_load_dword v{vreg}, v{vaddr}, {sr(srdn)}, {soff} offen sc1'),
             I('s_waitcnt vmcnt(0)'),
             I(f'v_readfirstlane_b32 s{sT0}, v{vreg}'),
             I(f's_add_u32 s{sT1}, s{sT1}, 1'),
             I(f's_cmp_gt_u32 s{sT1}, {SPIN_MAX}'), I(f's_cbranch_scc1 {label}_ok'),
             I(f's_cmp_eq_u32 s{sT0}, {want}'), I(f's_cbranch_scc0 {label}_loop'),
             I(f's_branch {label}_ok')]


SPIN_MAX = 200000
STAMPS = False
TOUCH = 0
EXTRA = 0
WS_STAMP = 0xB40000


def stamp(n):
    return [I(f'{STAMPS} s[{4+2*n}:{5+2*n}]')] if STAMPS else []


def stamp_begin():
    return [I(f'{STAMPS} s[92:93]'), I('s_memrealtime s[94:95]')] if STAMPS else []


def stamp_end(n, kernel):
    if not STAMPS:
        return []
    out = [I(f'{STAMPS} s[96:97]'), I('s_memrealtime s[98:99]'), I('s_waitcnt lgkmcnt(0)'),
           I(f's_lshl_b32 s{sT0}, s2, 2'), I(f's_add_u32 s{sT0}, s{sT0}, s{sW}'), I(f's_lshl_b32 s{sT0}, s{sT0}, 6'),
           I(f's_add_u32 s{sT0}, s{sT0}, {WS_STAMP + kernel*0x10000}'), I('s_mov_b64 exec, 1'), I('v_mov_b32 v16, 0')]
    vals = ['s94', 's98', 's92', 's96'] + [f's{4+2*i}' for i in range(n)]
    while len(vals) % 4:
        vals.append('0')
    for i, v in enumerate(vals):
        out.append(I(f'v_mov_b32 v{i}, {v}'))
    for i in range(0, len(vals), 4):
        out.append(I(f'buffer_store_dwordx4 v[{i}:{i+3}], v16, {sr(sWS)}, s{sT0} offen offset:{4*i}'))
    return out

XL, ACCA, ACCB = 0, 64, 128
vTR = 192
vTRH = 198
vL16 = 200
vDM = 201
vRS, vNM = 207, 208
vZERO = 209
vT = 210
vFLG = vT + 29
aXH, aFR = 0, 64
NFR = 12


def slot_of(n):
    return 8 + n if n < 2 else (n - 2) % 8


def gu_epilogue(acc, npair, sa2, koff):
    out = []
    t = 0
    for b in range(npair):
        g0, u0 = acc + 16 * b, acc + 16 * (npair + b)
        for half in range(2):
            T = vT + 30 + 4 * (t % 4)
            t += 1
            for q in range(2):
                idx = [8 * half + 4 * q + j for j in range(4)]
                out += [I(f'v_mul_f32 v{g0+i}, s{sNL2E}, v{g0+i}') for i in idx]
                out += [I(f'v_exp_f32 v{g0+i}, v{g0+i}') for i in idx]
                out += [I(f'v_add_f32 v{g0+i}, 1.0, v{g0+i}') for i in idx]
                out += [I(f'v_rcp_f32 v{g0+i}, v{g0+i}') for i in idx]
                out += [I(f'v_mul_f32 v{u0+i}, v{g0+i}, v{u0+i}') for i in idx]
                out += [I(f'v_cvt_pk_bf16_f32 v{T+2*q+j}, v{u0+idx[2*j]}, v{u0+idx[2*j+1]}') for j in range(2)]
            out.append(I(f'buffer_store_dwordx4 {R("v",T,4)}, v{vL16}, {sr(sWS)}, s{sa2} offen offset:{1024*(koff+2*b+half)} sc1', tag='hst'))
    return out


def phi(regs, tmp):
    out = []
    for i in range(0, len(regs), 4):
        g = regs[i:i + 4]
        out += [I(f'v_mul_f32 v{tmp+j}, s{sL2E}, v{r}') for j, r in enumerate(g)]
        out += [I(f'v_max_f32 v{r}, s{sEPS}, v{r}') for r in g]
        out += [I(f'v_exp_f32_e64 v{tmp+j}, v{tmp+j} clamp') for j in range(4)]
        out += [I(f'v_add_f32 v{r}, v{tmp+j}, v{r}') for j, r in enumerate(g)]
    return out


SCR = 8 * 16384


def kv_epilogue():
    K0, V0 = ACCA, ACCA + 32
    PK, PV = vT, vT + 16
    TP = vT + 32
    ZR = vT + 36
    AD = vT + 38
    p1 = []
    for b in range(2):
        p1 += [I(f'v_cvt_pk_bf16_f32 v{PV+8*b+j}, v{V0+16*b+2*j}, v{V0+16*b+2*j+1}') for j in range(8)]
    for b in range(2):
        k = K0 + 16 * b
        p1 += phi(list(range(k, k + 16)), TP)
        p1 += [I(f'v_cvt_pk_bf16_f32 v{PK+8*b+j}, v{k+2*j}, v{k+2*j+1}') for j in range(8)]
        d = V0 + 16 * b
        p1.append(I(f'v_mfma_f32_32x32x16_bf16 {R("v",d,16)}, {R("v",PK+8*b,4)}, {R("v",PV+8*b,4)}, 0'))
        p1.append(I(f'v_mfma_f32_32x32x16_bf16 {R("v",d,16)}, {R("v",PK+8*b+4,4)}, {R("v",PV+8*b+4,4)}, {R("v",d,16)}'))
        for st in (8, 4, 2):
            p1 += [I(f'v_add_f32 v{k+j}, v{k+j}, v{k+st+j}') for j in range(st)]
        p1.append(I(f'v_add_f32 v{ZR+b}, v{k}, v{k+1}'))
    p1 += [I(f'v_add_u32 v{AD}, s{sW4K}, v{vL16}'),
           I(f'v_lshrrev_b32 v{AD+1}, 10, s{sW4K}'.replace(f'10, s{sW4K}', f'10, v{AD}')),
           I(f'v_add_u32 v{AD+1}, v{AD+1}, v{vL16}')]
    for b in range(2):
        d = V0 + 16 * b
        p1 += [I(f'v_cndmask_b32 v{d+j}, v{d+j}, v{d+8+j}, s[{sSEL}:{sSEL+1}]') for j in range(8)]
        for q in range(2):
            p1.append(I(f'ds_write_b128 v{AD}, {R("v",d+4*q,4)} offset:{(2*b+q)*1024}'))
        p1.append(I(f'ds_write_b32 v{AD+1}, v{ZR+b} offset:{16384+1024*b}'))
    p2 = []
    RD = K0
    ZD = K0 + 16
    for w in range(4):
        p2.append(I(f'ds_read_b128 {R("v",RD+4*w,4)}, v{AD+2} offset:{w*4096}'))
    p2.append(I(f'ds_read_b128 {R("v",ZD,4)}, v{AD+3} offset:16384'))
    for j in range(4):
        p2.append(I(f'v_add_f32 v{RD+j}, v{RD+j}, v{RD+4+j}'))
    for j in range(4):
        p2.append(I(f'v_add_f32 v{RD+8+j}, v{RD+8+j}, v{RD+12+j}'))
    p2 += [I(f'v_add_f32 v{ZD}, v{ZD}, v{ZD+1}'), I(f'v_add_f32 v{ZD+2}, v{ZD+2}, v{ZD+3}')]
    for j in range(4):
        p2.append(I(f'v_add_f32 v{RD+j}, v{RD+j}, v{RD+8+j}'))
    p2 += [I(f'v_add_f32 v{ZD}, v{ZD}, v{ZD+2}'),
           I(f'buffer_store_dwordx4 {R("v",RD,4)}, v{vL16}, {sr(sWS)}, s{sKV} offen sc1', tag='kvst'),
           I(f'v_mov_b32 v{ZD+1}, v{ZD}'),
           I(f'v_and_b32 v{ZD+2}, 0xf0, v{vL16}'),
           I(f'v_lshrrev_b32 v{ZD+2}, 2, v{ZD+2}'),
           I(f'v_permlane32_swap_b32 v{ZD}, v{ZD+1}'),
           I(f'v_add_f32 v{ZD}, v{ZD}, v{ZD+1}'),
           I(f'buffer_store_dword v{ZD}, v{ZD+2}, {sr(sWS)}, s{sZ} offen sc1', tag='kvst')]
    pre = [I(f'v_and_b32 v{AD+3}, 0x2f0, v{vL16}'),
           I(f's_and_b32 s{sT0}, s{sW}, 1'), I(f's_lshl_b32 s{sT0}, s{sT0}, 8'),
           I(f's_lshr_b32 s{sT1}, s{sW}, 1'), I(f's_lshl_b32 s{sT2}, s{sT1}, 10'),
           I(f's_add_u32 s{sT0}, s{sT0}, s{sT2}'), I(f's_add_u32 s{sT0}, s{sT0}, {SCR}'),
           I(f'v_add_u32 v{AD+3}, s{sT0}, v{AD+3}'),
           I(f'v_and_b32 v{AD+2}, 0x100, v{vL16}'),
           I(f'v_lshlrev_b32 v{AD+2}, 2, v{AD+2}'),
           I(f'v_add3_u32 v{AD+2}, v{AD+2}, v{AD+3}, s{sT2}')]
    fix = []
    for ins in p1:
        fix.append(ins)
        if ins.text.startswith(f'v_add_u32 v{AD+1}, v{AD+1}'):
            fix += [I(f'v_add_u32 v{AD}, {SCR}, v{AD}'), I(f'v_add_u32 v{AD+1}, {SCR}, v{AD+1}')]
    return pre + fix, p2


def norm_step(s):
    out = []
    src = XL + 4 * s if s < 16 else ACCB + 4 * (s - 16)
    T = vT + (8 if s & 1 else 0) + 30
    for j in range(4):
        out += [I(f'v_lshlrev_b32 v{T+2*j}, 16, v{src+j}'), I(f'v_and_b32 v{T+2*j+1}, s{sMASK}, v{src+j}')]
    for j in range(8):
        out.append(I(f'v_fma_f32 v{T+j}, v{T+j}, v{vRS}, v{vNM}'))
    for j in range(4):
        out.append(I(f'v_cvt_pk_bf16_f32 v{src+j}, v{T+2*j}, v{T+2*j+1}'))
    if s >= 16:
        for j in range(4):
            out.append(I(f'v_accvgpr_write_b32 a{aXH+4*(s-16)+j}, v{src+j}'))
    return out


def xn_frag(s):
    return R('v', XL + 4 * s, 4) if s < 16 else R('a', aXH + 4 * (s - 16), 4)


def w_dma(typ, n):
    sb = 0 if n < 8 else (1 if n < 16 else 2)
    if sb < 2:
        tab = (sTQ if (typ == 'A' and sb == 0) else sTG) + (n & 7)
    else:
        tab = (sTG if typ == 'A' else sTQ) + 2 * (n - 16)
    if typ == 'A':
        s0, s1 = (sC, sD_) if sb == 0 else (sA, sB)
    else:
        s0, s1 = (sA, sB) if sb < 2 else (sC, sD_)
    out = [I(f's_add_u32 m0, s{sW4K}, {slot_of(n)*16384}')]
    for q in range(4):
        off = f' offset:{1024*q}' if q else ''
        out.append(I(f'buffer_load_dwordx4 v{vDM+2*sb+(q&1)}, {sr(s0 if q < 2 else s1)}, s{tab} offen{off} lds', tag=f'W{n}'))
    return out


def frag_reads(typ, f):
    n, i = f >> 4, f & 15
    base = slot_of(n) * 16384
    win, base = base >> 16, base & 0xffff
    dst = aFR + 4 * (f % NFR)
    if n < 16:
        sp, blk = i >> 2, i & 3
        off, addr, step = base + sp * 4096 + (blk >> 1) * 2048, vTR + 2 * win + (blk & 1), 512
    elif typ == 'B':
        ks, b = i >> 1, i & 1
        off, addr, step = base + ks * 2048, vTR + 2 * win + b, 512
    else:
        ks, c = i >> 1, i & 1
        assert win < 2
        off, addr, step = base + (ks >> 1) * 4096 + c * 2048 + (ks & 1) * 1024, vTRH + win, 256
    return [I(f'ds_read_b64_tr_b16 {R("a",dst+2*t,2)}, v{addr} offset:{off+step*t}') for t in range(2)]


def mfma1(typ, f):
    n, i = f >> 4, f & 15
    fr = R('a', aFR + 4 * (f % NFR), 4)
    if n < 16:
        s, blk = (n & 7) * 4 + (i >> 2), i & 3
        acc = (ACCA if n < 8 else ACCB) + 16 * blk
    else:
        s, blk = (n - 16) * 8 + (i >> 1), i & 1
        acc = ACCA + 16 * blk
    x = xn_frag(s)
    a, b = (x, fr) if (typ == 'A' and n < 8) else (fr, x)
    c = '0' if s == 0 else R('v', acc, 16)
    return I(f'v_mfma_f32_32x32x16_bf16 {R("v",acc,16)}, {a}, {b}, {c}'), s


def k1_prologue(p, lab):
    p += stamp_begin()
    p += [I('s_cmp_ge_u32 s2, 256'), I(f's_cbranch_scc1 {lab}_exit'),
          I('s_load_dwordx16 s[4:19], s[0:1], 0'), I('s_load_dwordx4 s[20:23], s[0:1], 64')]
    code_prefetch(p, lab, f'{lab}_end', vT, 254)
    p += [I(f'v_lshrrev_b32 v{vT}, 6, v0'), I(f'v_and_b32 v{vL16}, 63, v0'),
          I(f'v_readfirstlane_b32 s{sW}, v{vT}'),
          I(f's_lshr_b32 s{sT0}, s2, 3'), I(f's_and_b32 s{sRB}, s{sT0}, 7'),
          I(f's_and_b32 s{sT1}, s2, 1'), I(f's_lshl_b32 s{sT1}, s{sT1}, 3'), I(f's_add_u32 s{sRB}, s{sRB}, s{sT1}'),
          I(f's_lshr_b32 s{sT0}, s{sT0}, 3'), I(f's_and_b32 s{sT1}, s2, 6'), I(f's_lshl_b32 s{sT1}, s{sT1}, 1'),
          I(f's_add_u32 s{sCB}, s{sT0}, s{sT1}'), I(f's_lshr_b32 s{sM}, s{sCB}, 1'),
          I(f's_lshl_b32 s{sW4K}, s{sW}, 12')]
    L = vL16
    XA = vT + 4
    p += [I(f'v_lshrrev_b32 v{vT}, 3, v{L}'),
          I(f'v_lshrrev_b32 v{vT+1}, 4, v{L}'),
          I(f'v_and_b32 v{XA+1}, 7, v{L}'),
          I(f'v_xor_b32 v{vT+1}, v{vT+1}, v{XA+1}'),
          I(f'v_lshlrev_b32 v{vT+1}, 4, v{vT+1}'),
          I(f'v_lshl_add_u32 v{XA}, v{vT}, 10, v{vT+1}'),
          I(f'v_xor_b32 v{XA+1}, 64, v{XA}'),
          I(f'v_add_u32 v{XA+1}, 7168, v{XA+1}'),
          I(f'v_add_u32 v{XA+2}, {2*7168}, v{XA}'),
          I(f'v_add_u32 v{XA+3}, {2*7168}, v{XA+1}'),
          I(f's_lshl_b32 s{sXO}, s{sRB}, 2'), I(f's_add_u32 s{sXO}, s{sXO}, s{sW}'),
          I(f's_mul_i32 s{sKV}, s{sXO}, {NK2*1024}'),
          I(f's_lshl_b32 s{sXO}, s{sXO}, 15')]
    p += srd(sX, 4, 5, 0, S * D * 2)
    p += srd(sWS, 22, 23, 0, WS_END)
    p += [I(f'v_mov_b32 v{vZERO}, 0')]
    p += [I(f's_or_b32 s{sT0}, s2, s{sW}'), I(f's_cmp_lg_u32 s{sT0}, 0'), I(f's_cbranch_scc1 {lab}_noclr'),
          I(f'v_lshlrev_b32 v{vT}, 12, v{L}'), I(f's_mov_b32 s{sT1}, {WS_CNT}'),
          I(f'buffer_store_dword v{vZERO}, v{vT}, {sr(sWS)}, s{sT1} offen sc1'),
          I('s_waitcnt vmcnt(0)')]
    p += srd(sDBG, 20, 21, 0, 256)
    p += [I(f'v_lshlrev_b32 v{vT}, 7, v{L}'), I(f'v_mov_b32 v{vT+1}, 1'),
          I(f'buffer_store_dword v{vT+1}, v{vT}, {sr(sDBG)}, 0 offen sc1'),
          I('s_waitcnt vmcnt(0)'),
          I(f'{lab}_noclr:')]
    if TOUCH:
        def touch(lo, nlines, nbytes, wave, k):
            out = srd(sDBG, lo, lo + 1, 0, nbytes)
            out += [I(f's_mul_i32 s{sT0}, s2, {nlines*128}'), I(f's_cmp_eq_u32 s{sW}, {wave}'),
                    I(f's_cselect_b32 s{sT0}, s{sT0}, 0x40000000'),
                    I(f'v_min_u32 v{vT}, {nlines-1}, v{L}'), I(f'v_lshlrev_b32 v{vT}, 7, v{vT}'),
                    I(f'buffer_load_dword v{250+k}, v{vT}, {sr(sDBG)}, s{sT0} offen')]
            return out
        p += touch(4, 64, S * D * 2, 0, 0)
        p += touch(6, 48, D * SQ, 1, 1)
        p += touch(12, 56, D * SG, 2, 2)
        p += touch(14, 56, D * SG, 3, 3)
    for u in range(8):
        if TOUCH and u == TOUCH:
            p += touch(16, 56, F * 1024, 0, 0)
            p += touch(8, 16, D * 1024, 1, 1)
        p.append(I(f's_add_u32 m0, s{sW4K}, {u*16384}'))
        if u:
            p.append(I(f's_add_u32 s{sXO}, s{sXO}, 128'))
        for q in range(4):
            off = f' offset:{1024*q}' if q else ''
            p.append(I(f'buffer_load_dwordx4 v{XA+q}, {sr(sX)}, s{sXO} offen{off} lds', tag=f'X{u}'))
    p += srd(sA, 12, 13, 0, D * SG)
    p += srd(sB, 14, 15, -2048, D * SG)
    p += srd(sC, 6, 7, 0, D * SQ)
    p += srd(sDBG, 20, 21, 0, 256)
    for n in range(8):
        p += [I(f's_mov_b32 s{sTG+n}, {n*64*SG}'), I(f's_mov_b32 s{sTQ+n}, {n*64*SQ}')]
    p += [I(f's_mov_b32 s{sNL2E}, {NLOG2E}'), I(f's_mov_b32 s{sL2E}, {LOG2E}'), I(f's_mov_b32 s{sMASK}, 0xffff0000'),
          I(f's_mov_b32 s{sEPS}, 0x358637bd'), I(f's_mov_b32 s{sONES}, 0x3f803f80'),
          I(f's_mov_b32 s{sSEL}, 0xffff0000'), I(f's_mov_b32 s{sSEL+1}, 0xffff0000')]
    p += [I(f'v_lshrrev_b32 v{vT}, 3, v{L}'),
          I(f'v_and_b32 v{vT+1}, 16, v{L}'), I(f'v_lshrrev_b32 v{vT+1}, 2, v{vT+1}'),
          I(f'v_and_b32 v{vT+2}, 7, v{L}'), I(f'v_xor_b32 v{vT+1}, v{vT+1}, v{vT+2}'),
          I(f'v_lshlrev_b32 v{vT+1}, 4, v{vT+1}')]
    p += [I(f's_and_b32 s{sT0}, s{sCB}, 1'), I(f's_cmp_eq_u32 s{sT0}, 1'), I(f's_cbranch_scc1 {lab}_B')]


def dma_addr(dst, rows_per_wave_shift, stride, colreg_expr, second):
    return [I(f's_lshl_b32 s{sT1}, s{sW}, {rows_per_wave_shift}'),
            I(f'v_add_u32 v{vT+2}, s{sT1}, v{vT}'),
            I(f'v_mul_u32_u24 v{vT+2}, {stride}, v{vT+2}'),
            I(f'v_add3_u32 v{dst}, v{vT+2}, v{vT+1}, s{colreg_expr}'),
            I(f'v_add_u32 v{dst+1}, {second}, v{dst}')]


def k1_path(typ, lab):
    p, tail = [], []
    L = vL16
    A = typ == 'A'
    if A:
        p += srd(sD_, 6, 7, -1024, D * SQ)
        p += [I(f's_lshl_b32 s{sT0}, s{sM}, 7'), I(f's_add_u32 s{sT0}, s{sT0}, 1024')]
        p += dma_addr(vDM, 4, SQ, sT0, 8 * SQ - 1024)
    else:
        p += srd(sD_, 6, 7, 16 * SQ - 2048, D * SQ)
        p += [I(f's_lshl_b32 s{sT0}, s{sM}, 7')]
        p += dma_addr(vDM, 4, SG, sT0, 8 * SG - 1024)
    p += w_dma(typ, 0) + w_dma(typ, 1)
    p += [I(f's_lshl_b32 s{sT0}, s{sM}, 7'), I(f's_add_u32 s{sT0}, s{sT0}, {128*(16 if A else 8)}')]
    p += dma_addr(vDM + 2, 4, SG, sT0, 8 * SG - 1024)
    if A:
        p += [I(f's_lshl_b32 s{sT0}, s{sM}, 6'), I(f's_add_u32 s{sT0}, s{sT0}, {128*24}'),
              I(f'v_lshrrev_b32 v{vT}, 2, v{L}'), I(f'v_and_b32 v{vT+1}, 3, v{L}'), I(f'v_lshlrev_b32 v{vT+1}, 4, v{vT+1}')]
        p += dma_addr(vDM + 4, 5, SG, sT0, 16 * SG - 1024)
    else:
        p += [I(f's_lshl_b32 s{sT0}, s{sM}, 7')]
        p += dma_addr(vDM + 4, 5, SQ, sT0, 8 * SQ - 1024)
    if A:
        p += [I(f's_lshl_b32 s{sT0}, s{sM}, 12'), I(f's_add_u32 s{sT0}, s{sT0}, s{sKV}'),
              I(f's_add_u32 s{sA2[1]}, s{sT0}, {64*1024}'),
              I(f's_lshl_b32 s{sT0}, s{sM}, 11'), I(f's_add_u32 s{sT0}, s{sT0}, s{sKV}'),
              I(f's_add_u32 s{sA2[2]}, s{sT0}, {96*1024}')]
        p += [I(f's_lshl_b32 s{sT0}, s{sM}, 2'), I(f's_add_u32 s{sT0}, s{sT0}, s{sW}'),
              I(f's_lshl_b32 s{sT0}, s{sT0}, 4'), I(f's_add_u32 s{sT0}, s{sT0}, s{sRB}'),
              I(f's_lshl_b32 s{sKV}, s{sT0}, 10'), I(f's_add_u32 s{sKV}, s{sKV}, {WS_KV}'),
              I(f's_lshl_b32 s{sZ}, s{sT0}, 6'), I(f's_add_u32 s{sZ}, s{sZ}, {WS_Z}')]
    else:
        p += [I(f's_lshl_b32 s{sT0}, s{sM}, 12'), I(f's_add_u32 s{sA2[0]}, s{sT0}, s{sKV}'),
              I(f's_add_u32 s{sA2[1]}, s{sA2[0]}, {32*1024}'), I(f's_add_u32 s{sA2[2]}, s{sA2[0]}, {112*1024}')]
        p += [I(f's_lshl_b32 s{sT0}, s{sM}, 2'), I(f's_add_u32 s{sT0}, s{sT0}, s{sW}'),
              I(f's_lshl_b32 s{sKV}, s{sT0}, 14'), I(f's_add_u32 s{sKV}, s{sKV}, {WS_KV}'),
              I(f's_lshl_b32 s{sZ}, s{sT0}, 10'), I(f's_add_u32 s{sZ}, s{sZ}, {WS_Z}')]
    p += [I(f's_lshl_b32 s{sCNT}, s{sM}, 12'), I(f's_add_u32 s{sCNT}, s{sCNT}, {WS_CNT}')]
    T0, T1, T2 = vT, vT + 1, vT + 2
    p += [I(f'v_lshrrev_b32 v{T0}, 5, v{L}'), I(f'v_lshlrev_b32 v{T0}, 3, v{T0}'),
          I(f'v_bfe_u32 v{T1}, v{L}, 2, 2'), I(f'v_add_u32 v{T0}, v{T0}, v{T1}'),
          I(f'v_and_b32 v{T1}, 16, v{L}'), I(f'v_lshlrev_b32 v{T1}, 1, v{T1}'),
          I(f'v_and_b32 v{T2}, 3, v{L}'), I(f'v_lshl_add_u32 v{T1}, v{T2}, 3, v{T1}'),
          I(f'v_lshl_add_u32 v{vTRH}, v{T0}, 6, v{T1}'), I(f'v_add_u32 v{vTRH+1}, 0x10000, v{vTRH}'),
          I(f'v_lshl_add_u32 v{vTR}, v{T0}, 7, v{T1}'),
          I(f'v_and_b32 v{T2}, 8, v{L}'), I(f'v_lshlrev_b32 v{T2}, 3, v{T2}'),
          I(f'v_xor_b32 v{vTR}, v{vTR}, v{T2}'), I(f'v_xor_b32 v{vTR+1}, 64, v{vTR}')]
    for w in (1, 2):
        p += [I(f'v_add_u32 v{vTR+2*w+b}, {w*0x10000}, v{vTR+b}') for b in range(2)]
    XR = vT + 8
    p += [I(f'v_bfe_u32 v{T0}, v{L}, 1, 3'), I(f'v_lshrrev_b32 v{T1}, 5, v{L}'), I(f'v_xor_b32 v{T0}, v{T0}, v{T1}'),
          I(f'v_lshlrev_b32 v{T0}, 4, v{T0}'), I(f'v_and_b32 v{T1}, 31, v{L}'),
          I(f'v_lshl_add_u32 v{T0}, v{T1}, 7, v{T0}'), I(f'v_add_u32 v{XR}, s{sW4K}, v{T0}')]
    p += [I(f'v_xor_b32 v{XR+j}, {32*j}, v{XR}') for j in range(1, 4)]
    p += [I(f'v_add_u32 v{XR+4+j}, 0x10000, v{XR+j}') for j in range(4)]
    p += [I(f'v_lshlrev_b32 v{vL16}, 4, v{L}')]
    SU, SQ2 = vT + 16, vT + 18
    p += [I(f'v_mov_b32 v{SU+j}, 0') for j in range(4)]

    def xreg(s):
        return XL + 4 * s if s < 16 else ACCB + 4 * (s - 16)

    def xreads(u):
        return [I(f'ds_read_b128 {R("v",xreg(4*u+j),4)}, v{XR+j+(4 if u >= 4 else 0)} offset:{(u&3)*16384}',
                  need=[f'X{u}'] if j == 0 else None) for j in range(4)]

    def xstats(u):
        out = []
        for j in range(16):
            r = xreg(4 * u) + j
            out += [I(f'v_dot2c_f32_bf16 v{SU+(j&1)}, s{sONES}, v{r}'), I(f'v_dot2c_f32_bf16 v{SQ2+(j&1)}, v{r}, v{r}')]
        return out
    p += stamp(0)
    p += xreads(0)
    p += stamp(1)
    for u in range(8):
        if u < 7:
            p += xreads(u + 1)
        p += xstats(u)
        if u & 1 and u < 7:
            p.append(I('s_barrier', need=[R('v', xreg(4 * u + 3), 4)]))
            p += w_dma(typ, u + 1) + w_dma(typ, u + 2)
    p += stamp(2)
    p.append(I('s_barrier', need=['W0']))
    p += w_dma(typ, 8) + w_dma(typ, 9)
    for f in range(8):
        p += frag_reads(typ, f)
    p += [I(f's_and_b32 s{sT0}, s2, 1'), I(f's_lshl_b32 s{sXO}, s{sT0}, 7'),
          I(f'buffer_load_dword v{vFLG}, v{vZERO}, {sr(sDBG)}, s{sXO} offen sc1')]
    p += [I(f'v_add_f32 v{SU}, v{SU}, v{SU+1}'), I(f'v_add_f32 v{SQ2}, v{SQ2}, v{SQ2+1}'),
          I(f'v_mov_b32 v{SU+1}, v{SU}'), I(f'v_mov_b32 v{SQ2+1}, v{SQ2}'),
          I(f'v_permlane32_swap_b32 v{SU}, v{SU+1}'), I(f'v_permlane32_swap_b32 v{SQ2}, v{SQ2+1}'),
          I(f'v_add_f32 v{SU}, v{SU}, v{SU+1}'), I(f'v_add_f32 v{SQ2}, v{SQ2}, v{SQ2+1}'),
          I(f'v_mul_f32 v{SU}, 0x3b000000, v{SU}'), I(f'v_mul_f32 v{SQ2}, 0x3b000000, v{SQ2}'),
          I(f'v_fma_f32 v{SQ2}, -v{SU}, v{SU}, v{SQ2}'), I(f'v_max_f32 v{SQ2}, 0, v{SQ2}'),
          I(f'v_cvt_pk_bf16_f32 v{SU}, v{SU}, v{SQ2}'),
          I(f'v_and_b32 v{SQ2}, s{sMASK}, v{SU}'), I(f'v_lshlrev_b32 v{SU}, 16, v{SU}'),
          I(f'v_add_f32 v{SQ2}, 0x3727c5ac, v{SQ2}'),
          I(f'v_cvt_pk_bf16_f32 v{SQ2}, v{SQ2}, v{SQ2}'), I(f'v_and_b32 v{SQ2}, s{sMASK}, v{SQ2}'),
          I(f'v_sqrt_f32 v{SQ2}, v{SQ2}'),
          I(f'v_cvt_pk_bf16_f32 v{SQ2}, v{SQ2}, v{SQ2}'), I(f'v_and_b32 v{SQ2}, s{sMASK}, v{SQ2}'),
          I(f'v_rcp_f32 v{vRS}, v{SQ2}'),
          I(f'v_mul_f32_e64 v{vNM}, -v{SU}, v{vRS}')]
    p += norm_step(0)

    p += stamp(3)
    fill = Filler()
    kv2 = None
    kv_state = 0
    NF = 320
    for f in range(NF):
        n, i = f >> 4, f & 15
        if f == 128:
            p += stamp(4)
            if A:
                kv1, kv2 = kv_epilogue()
                fill.add(kv1)
                kv_state = 1
            else:
                fill.add(gu_epilogue(ACCA, 2, sA2[0], 0))
        if f == 256:
            p += stamp(5)
            fill.add(fill.drain())
            assert fill.cost() == 0 or True
            p += fill.drain()
            fill.add(gu_epilogue(ACCB, 2, sA2[1], 0))
        m, s = mfma1(typ, f)
        if f % 4 == 0:
            p.append(I('@need', need=[R('a', aFR + 4 * ((f + j) % NFR), 4) for j in range(4)]))
        if n < 8 and (i & 3) == 0:
            p += fill.drain()
            if s < 31:
                fill.add(norm_step(s + 1))
        p.append(m)
        extra = 0
        if i == 8 and n < 19:
            need = [f'W{n+1}']
            pre, post = [], []
            if n == 5:
                pre = [I(f's_cmp_lg_u32 s{sW}, 0', need=[f'v{vFLG}']), I(f's_cbranch_scc1 {lab}_rdy_ok')]
                spin_until(pre, f'{lab}_rdy', vFLG, vZERO, sDBG, f's{sXO}', 1, tail)
            if kv_state == 1 and fill.cost() == 0:
                pre = [I('s_waitcnt lgkmcnt(0)')]
                fill.add(kv2)
                kv_state = 2
            elif kv_state == 2 and fill.cost() == 0:
                need.append('kvst')
                post = [I(f's_cmp_lg_u32 s{sW}, 0'), I(f's_cbranch_scc1 {lab}_nosig'),
                        I('s_mov_b64 exec, 1'), I(f'v_mov_b32 v{vT}, 1'),
                        I(f'buffer_atomic_add v{vT}, v{vZERO}, {sr(sWS)}, s{sCNT} offen sc1', tag='nocount'),
                        I('s_mov_b64 exec, -1'), I(f'{lab}_nosig:')]
                kv_state = 3
            p += pre
            p.append(I('s_barrier', need=need))
            p += post
            if 10 <= n + 7 < 20:
                p += w_dma(typ, n + 7)
                extra = 5
        if f + 8 < NF:
            p += frag_reads(typ, f + 8)
        if not A and f == 296:
            p.append(I(f'buffer_load_dword v{vFLG}, v{vZERO}, {sr(sWS)}, s{sCNT} offen sc1'))
        if n < 8:
            left = 4 - (i & 3)
            p += fill.take((fill.cost() + left - 1) // left)
        elif f >= 130 and not (256 <= f < 258):
            if n < 16:
                bud = 4 if A else 3
            else:
                left = NF - f
                bud = max(3, (fill.cost() + left - 1) // left)
            p += fill.take(max(1, bud - extra // 2))
    assert kv_state in (0, 3), kv_state
    p += stamp(6)
    p += fill.drain()
    if A:
        p += gu_epilogue(ACCA, 1, sA2[2], 0)
    else:
        spin_until(p, f'{lab}_kv', vFLG, vZERO, sWS, f's{sCNT}', 16, tail)
        p += stamp(7)
        X, Y = ACCB, vT
        for i in range(16):
            if i and i % 4 == 0:
                p.append(I(f's_add_u32 s{sKV}, s{sKV}, 4096'))
            off = f' offset:{1024*(i&3)}' if i & 3 else ''
            p.append(I(f'buffer_load_dwordx4 {R("v",X+4*i,4)}, v{vL16}, {sr(sWS)}, s{sKV} offen{off} sc1'))
        p += [I(f'v_and_b32 v{vT+4}, 0xf0, v{vL16}'), I(f'v_lshlrev_b32 v{vT+4}, 2, v{vT+4}'),
              I(f'v_and_b32 v{vT+5}, 0x100, v{vL16}'), I(f'v_lshrrev_b32 v{vT+5}, 3, v{vT+5}'),
              I(f'v_lshrrev_b32 v{vT+6}, 9, v{vL16}'), I(f'v_lshlrev_b32 v{vT+6}, 4, v{vT+6}'),
              I(f'v_add3_u32 v{vT+4}, v{vT+4}, v{vT+5}, v{vT+6}'),
              I(f'buffer_load_dwordx4 {R("v",Y,4)}, v{vT+4}, {sr(sWS)}, s{sZ} offen sc1')]
        PQ = vT + 12
        for b in range(2):
            q = ACCA + 16 * b
            p += phi(list(range(q, q + 16)), vT + 8)
            p += [I(f'v_cvt_pk_bf16_f32 v{PQ+8*b+j}, v{q+2*j}, v{q+2*j+1}') for j in range(8)]
        for st in (32, 16, 8, 4):
            p += [I(f'v_add_f32 v{X+j}, v{X+j}, v{X+st+j}') for j in range(st)]
        for rot in (8, 4, 2, 1):
            p += [I(f'v_add_f32_dpp v{Y+j}, v{Y+j}, v{Y+j} row_ror:{rot} row_mask:0xf bank_mask:0xf') for j in range(4)]
        IM = vT + 28
        p += [I(f'v_cvt_pk_bf16_f32 v{IM}, v{X}, v{X+1}'), I(f'v_cvt_pk_bf16_f32 v{IM+1}, v{X+2}, v{X+3}'),
              I(f'v_cvt_pk_bf16_f32 v{IM+2}, v{Y}, v{Y+1}'), I(f'v_cvt_pk_bf16_f32 v{IM+3}, v{Y+2}, v{Y+3}'),
              I(f's_lshl_b32 s{sT0}, s{sW}, 10'), I(f's_add_u32 s{sT0}, s{sT0}, {SCR}'),
              I(f'v_add_u32 v{vT+4}, s{sT0}, v{vL16}'), I(f'v_add_u32 v{vT+5}, {SCR}, v{vL16}'),
              I(f'v_permlane16_swap_b32 v{IM}, v{IM+2}'), I(f'v_permlane16_swap_b32 v{IM+1}, v{IM+3}'),
              I(f'ds_write_b128 v{vT+4}, {R("v",IM,4)}'), I('s_waitcnt lgkmcnt(0)'), I('s_barrier')]
        AL = ACCA + 32
        p += [I(f'ds_read_b128 {R("v",AL+4*h,4)}, v{vT+5} offset:{1024*h}') for h in range(4)]
        for h in range(4):
            p.append(I(f'v_mfma_f32_32x32x16_bf16 {R("v",ACCB+16*h,16)}, {R("v",AL+4*h,4)}, {R("v",PQ+4*h,4)}, 0'))
        for h in range(4):
            d = ACCB + 16 * h
            p += [I(f'v_add_f32 v{d+8}, s{sEPS}, v{d+8}'), I(f'v_rcp_f32 v{d+8}, v{d+8}')]
            p += [I(f'v_mul_f32 v{d+j}, v{d+8}, v{d+j}') for j in range(8)]
            p += [I(f'v_cvt_pk_bf16_f32 v{d+12+j}, v{d+2*j}, v{d+2*j+1}') for j in range(4)]
            off = f' offset:{1024*h}' if h else ''
            p.append(I(f'buffer_store_dwordx4 {R("v",d+12,4)}, v{vL16}, {sr(sWS)}, s{sA2[2]} offen{off} sc1', tag='hst'))
    p += stamp_end(8, 0)
    p.append(I('s_endpgm'))
    return p, tail


def build_k1(lab):
    pro = []
    k1_prologue(pro, lab)
    pro, vm, lg = insert_waits(pro)
    body = []
    allp = list(pro)
    for typ in 'AB':
        p, tail = k1_path(typ, f'{lab}_{typ}')
        p, _, _ = insert_waits(p, vm, lg)
        if typ == 'B':
            allp.append(I(f'{lab}_B:'))
        allp += p + tail
    allp += [I(f'{lab}_exit:'), I('s_endpgm'), I(f'{lab}_end:')]
    return insert_nops(allp)


def build_k2(lab):
    p = []
    YA = 0
    SA = 64
    HB = 80
    NH = 32
    vL, vDA, vT2, vXA, vXD = 208, 209, 211, 217, 220
    T = 228
    aW = 0
    NW = 8
    aO = 128
    RING = 8
    WO = 65536
    p += stamp_begin()
    p += [I('s_cmp_ge_u32 s2, 256'), I(f's_cbranch_scc1 {lab}_exit'),
          I('s_load_dwordx16 s[4:19], s[0:1], 0'), I('s_load_dwordx4 s[20:23], s[0:1], 64')]
    code_prefetch(p, lab, f'{lab}_end', T, 254)
    p += [I(f'v_lshrrev_b32 v{T}, 6, v0'), I(f'v_and_b32 v{vL}, 63, v0'), I(f'v_readfirstlane_b32 s{sW}, v{T}'),
          I(f's_lshr_b32 s{sT0}, s2, 3'), I(f's_and_b32 s{sR2}, s{sT0}, 7'), I(f's_lshr_b32 s{sCB}, s{sT0}, 3'),
          I(f's_and_b32 s{sT1}, s2, 6'), I(f's_lshl_b32 s{sT1}, s{sT1}, 2'), I(f's_add_u32 s{sR2}, s{sR2}, s{sT1}'),
          I(f's_and_b32 s{sT1}, s2, 1'), I(f's_lshl_b32 s{sT1}, s{sT1}, 2'), I(f's_add_u32 s{sCB}, s{sCB}, s{sT1}')]
    p += [I(f'v_lshrrev_b32 v{T}, 3, v{vL}'),
          I(f'v_and_b32 v{T+1}, 16, v{vL}'), I(f'v_lshrrev_b32 v{T+1}, 2, v{T+1}'),
          I(f'v_and_b32 v{T+2}, 7, v{vL}'), I(f'v_xor_b32 v{T+1}, v{T+1}, v{T+2}'),
          I(f'v_lshlrev_b32 v{T+1}, 4, v{T+1}'),
          I(f'v_lshl_add_u32 v{vDA}, v{T}, 10, v{T+1}'),
          I(f's_lshl_b32 s{sT0}, s{sCB}, 7'), I(f's_lshl_b32 s{sT1}, s{sW}, 14'), I(f's_add_u32 s{sT0}, s{sT0}, s{sT1}'),
          I(f'v_add_u32 v{vDA}, s{sT0}, v{vDA}'), I(f'v_add_u32 v{vDA+1}, {8192-1024}, v{vDA}'),
          I(f's_lshl_b32 s{sW4K}, s{sW}, 14'),
          I(f's_lshl_b32 s{sKV}, s{sW}, 11')]
    p += srd(sA, 16, 17, 0, F * 1024)
    p += srd(sB, 8, 9, 0, D * 1024)
    p += srd(sWS, 22, 23, 0, WS_END)
    p += [I(f'v_lshlrev_b32 v{T+4}, 4, v{vL}'),
          I(f's_mul_i32 s{sA2[0]}, s{sR2}, {2*NK2*1024}'), I(f's_lshl_b32 s{sT0}, s{sW}, 10'),
          I(f's_add_u32 s{sA2[0]}, s{sA2[0]}, s{sT0}'), I(f's_add_u32 s{sA2[1]}, s{sA2[0]}, {NK2*1024}'),
          I(f's_mov_b32 s{sXO}, 0'), I(f's_mov_b32 s{sZ}, 0')]
    vH = T + 4

    def wd_dma(q):
        out = [I(f's_add_u32 m0, s{sW4K}, {(q % RING)*2048}')]
        if q:
            out.append(I(f's_add_u32 s{sXO}, s{sXO}, 65536'))
        out += [I(f'buffer_load_dwordx4 v{vDA}, {sr(sA)}, s{sXO} offen lds', tag=f'D{q}'),
                I(f'buffer_load_dwordx4 v{vDA+1}, {sr(sA)}, s{sXO} offen offset:1024 lds', tag=f'D{q}')]
        return out

    def wo_dma(j):
        out = [I(f's_add_u32 m0, s{sKV}, {WO + j*8192}')]
        if j:
            out.append(I(f's_add_u32 s{sZ}, s{sZ}, 65536'))
        out += [I(f'buffer_load_dwordx4 v{vDA}, {sr(sB)}, s{sZ} offen lds', tag='WO'),
                I(f'buffer_load_dwordx4 v{vDA+1}, {sr(sB)}, s{sZ} offen offset:1024 lds', tag='WO')]
        return out

    def h_load(q):
        out = []
        if q:
            out += [I(f's_add_u32 s{sA2[0]}, s{sA2[0]}, 4096'), I(f's_add_u32 s{sA2[1]}, s{sA2[1]}, 4096')]
        for tb in range(2):
            out.append(I(f'buffer_load_dwordx4 {R("v",HB+4*((2*q+tb)%NH),4)}, v{vH}, {sr(sWS)}, s{sA2[tb]} offen sc1'))
        return out

    def o_load(j):
        out = []
        if j and j % 4 == 0:
            out.append(I(f's_add_u32 s{sA2[2]}, s{sA2[2]}, 4096'))
        off = f' offset:{1024*(j&3)}' if j & 3 else ''
        out.append(I(f'buffer_load_dwordx4 {R("v",HB+4*((56+j)%NH),4)}, v{vH}, {sr(sWS)}, s{sA2[2]} offen{off} sc1'))
        return out
    PRE = RING
    for q in range(PRE):
        p += wd_dma(q) + h_load(q)
    for q in range(PRE, 12):
        p += h_load(q)
    T0, T1, T2 = T, T + 1, T + 2
    p += [I(f'v_lshrrev_b32 v{T0}, 5, v{vL}'), I(f'v_lshlrev_b32 v{T0}, 2, v{T0}'),
          I(f'v_bfe_u32 v{T1}, v{vL}, 2, 2'), I(f'v_add_u32 v{T0}, v{T0}, v{T1}'), I(f'v_lshlrev_b32 v{T0}, 7, v{T0}'),
          I(f'v_and_b32 v{T1}, 1, v{vL}'), I(f'v_lshl_add_u32 v{T0}, v{T1}, 5, v{T0}'),
          I(f'v_and_b32 v{T1}, 16, v{vL}'), I(f'v_add_u32 v{T0}, v{T0}, v{T1}'),
          I(f'v_and_b32 v{T1}, 2, v{vL}'), I(f'v_lshl_add_u32 v{T0}, v{T1}, 2, v{T0}'),
          I(f'v_and_b32 v{T1}, 8, v{vL}'), I(f'v_lshlrev_b32 v{T1}, 3, v{T1}'), I(f'v_xor_b32 v{T0}, v{T0}, v{T1}'),
          I(f'v_add_u32 v{vT2}, s{sW4K}, v{T0}'), I(f'v_xor_b32 v{vT2+1}, 64, v{vT2}'),
          I(f's_lshr_b32 s{sT0}, s{sW}, 1'), I(f's_lshl_b32 s{sT0}, s{sT0}, 6'),
          I(f'v_xor_b32 v{vT2+2}, s{sT0}, v{T0}'), I(f'v_add_u32 v{vT2+2}, {WO}, v{vT2+2}'),
          I(f's_lshl_b32 s{sT1}, s{sR2}, 1'), I(f's_and_b32 s{sT2}, s{sW}, 1'), I(f's_add_u32 s{sT1}, s{sT1}, s{sT2}'),
          I(f's_mul_i32 s{sA2[2]}, s{sT1}, {NK2*1024}'), I(f's_add_u32 s{sA2[2]}, s{sA2[2]}, {112*1024}'),
          I(f's_lshl_b32 s{sT1}, s{sT1}, 15'), I(f's_lshl_b32 s{sT2}, s{sCB}, 7'),
          I(f's_add_u32 s{sT1}, s{sT1}, s{sT2}'), I(f's_add_u32 s{sT1}, s{sT1}, s{sT0}'),
          I(f'v_and_b32 v{T1}, 31, v{vL}'), I(f'v_lshlrev_b32 v{T1}, 10, v{T1}'),
          I(f'v_and_b32 v{T2}, 32, v{vL}'), I(f'v_add3_u32 v{vXA}, v{T1}, v{T2}, s{sT1}')]
    p += srd(sX, 4, 5, 0, S * D * 2)
    p += srd(sC, 18, 19, 0, S * D * 2)
    p += [I(f's_mov_b32 s{sNL2E}, {NLOG2E}'), I(f's_mov_b32 s{sMASK}, 0xffff0000')]

    def wd_reads(q, nb):
        dst = aW + 4 * ((2 * q + nb) % NW)
        return [I(f'ds_read_b64_tr_b16 {R("a",dst+2*t,2)}, v{vT2+nb} offset:{(q%RING)*2048+1024*t}',
                  need=[f'D{q}'] if (t == 0 and nb == 0) else None) for t in range(2)]

    def wo_reads(j):
        return [I(f'ds_read_b64_tr_b16 {R("a",aO+4*j+2*t,2)}, v{vT2+2} offset:{j*2048+1024*t}') for t in range(2)]
    p += stamp(0)
    for q in range(2):
        p += wd_reads(q, 0) + wd_reads(q, 1)
    p += stamp(1)
    NQ = 28
    side = Filler()
    for q in range(NQ):
        if q in (8, 16):
            p += stamp(1 + q // 8)
        p.append(I('@need', need=[R('a', aW + 4 * ((2 * q) % NW), 8), R('v', HB + 4 * ((2 * q) % NH), 8)]))
        for g in range(4):
            nb, tb = g >> 1, g & 1
            acc = R('v', YA + 16 * g, 16)
            p.append(I(f'v_mfma_f32_32x32x16_bf16 {acc}, {R("a",aW+4*((2*q+nb)%NW),4)}, {R("v",HB+4*((2*q+tb)%NH),4)}, {"0" if q == 0 else acc}'))
            if g < 2 and q + 2 < NQ:
                p += wd_reads(q + 2, g)
            if g == 0 and q + PRE < NQ:
                p += wd_dma(q + PRE)
            if g == 2:
                if q + 12 < NQ:
                    p += h_load(q + 12)
                elif q >= 16:
                    for j in range(2 * (q - 16), 2 * (q - 16) + 2):
                        p += o_load(j)
            if g == 3 and 4 <= q < 12:
                p += wo_dma(q - 4)
            if g == 3 and q == 14:
                p += [I(f'buffer_load_dwordx4 {R("v",vXD,4)}, v{vXA}, {sr(sX)}, 0 offen'),
                      I(f'buffer_load_dwordx4 {R("v",vXD+4,4)}, v{vXA}, {sr(sX)}, 0 offen offset:16')]
            if g == 3 and q == 19:
                p.append(I('s_barrier', need=['WO']))
                for j in range(32):
                    side.add(wo_reads(j))
            if q >= 20:
                p += side.take(2)
    p += stamp(4)
    p += side.drain()
    for j in range(24, 32):
        p += o_load(j)
    p += [I(f'v_add_u32 v{T}, s{sW4K}, v{vH}'), I(f's_lshl_b32 s{sT0}, s{sW}, 12'), I(f'v_add_u32 v{T+1}, s{sT0}, v{vH}')]
    for g in range(4):
        for j in range(4):
            side.add([I(f'ds_write_b128 v{T}, {R("v",YA+16*g+4*j,4)} offset:{4096*g+1024*j}')])
    fill = Filler()
    state = 0
    for j in range(32):
        acc = R('v', SA, 16)
        if j % 4 == 0:
            p.append(I('@need', need=[R('a', aO + 4 * j, 16)]))
        p.append(I(f'v_mfma_f32_32x32x16_bf16 {acc}, {R("a",aO+4*j,4)}, {R("v",HB+4*((56+j)%NH),4)}, {"0" if j == 0 else acc}'))
        if state == 0:
            if j >= 2:
                p += side.take(2)
            if side.cost() == 0:
                p += [I('s_waitcnt lgkmcnt(0)'), I('s_barrier')]
                for w in range(4):
                    for jj in range(4):
                        fill.add([I(f'ds_read_b128 {R("v",YA+16*w+4*jj,4)}, v{T+1} offset:{16384*w+1024*jj}')])
                for jj in range(16):
                    fill.add([I(f'v_add_f32 v{YA+jj}, v{YA+jj}, v{YA+16+jj}')])
                for jj in range(16):
                    fill.add([I(f'v_add_f32 v{YA+32+jj}, v{YA+32+jj}, v{YA+48+jj}')])
                for i in range(0, 16, 4):
                    idx = range(i, i + 4)
                    fill.add([I(f'v_add_f32 v{YA+k}, v{YA+k}, v{YA+32+k}') for k in idx])
                    fill.add([I(f'v_mul_f32 v{YA+16+k}, s{sNL2E}, v{YA+k}') for k in idx])
                    fill.add([I(f'v_exp_f32 v{YA+16+k}, v{YA+16+k}') for k in idx])
                    fill.add([I(f'v_add_f32 v{YA+16+k}, 1.0, v{YA+16+k}') for k in idx])
                    fill.add([I(f'v_rcp_f32 v{YA+16+k}, v{YA+16+k}') for k in idx])
                    fill.add([I(f'v_mul_f32 v{YA+k}, v{YA+k}, v{YA+16+k}') for k in idx])
                for k in range(8):
                    fill.add([I(f'v_lshlrev_b32 v{YA+32+2*k}, 16, v{vXD+k}'), I(f'v_and_b32 v{YA+33+2*k}, s{sMASK}, v{vXD+k}')])
                state = 1
        else:
            p += fill.take(6)
    p += stamp(5)
    p += fill.drain()
    for half in range(2):
        p += [I(f'v_fmac_f32 v{YA+32+8*half+k}, v{SA+8*half+k}, v{YA+8*half+k}') for k in range(8)]
        p += [I(f'v_cvt_pk_bf16_f32 v{vXD+4*half+k}, v{YA+32+8*half+2*k}, v{YA+33+8*half+2*k}') for k in range(4)]
        off = ' offset:16' if half else ''
        p.append(I(f'buffer_store_dwordx4 {R("v",vXD+4*half,4)}, v{vXA}, {sr(sC)}, 0 offen{off}'))
    p += stamp_end(6, 1)
    p += [I('s_endpgm'), I(f'{lab}_exit:'), I('s_endpgm'), I(f'{lab}_end:')]
    p, _, _ = insert_waits(p)
    return insert_nops(p)


def kd(name, vgpr, accum):
    return f""".section .rodata,"a"
.p2align 6
.amdhsa_kernel {name}
  .amdhsa_next_free_vgpr {vgpr}
  .amdhsa_next_free_sgpr 102
  .amdhsa_accum_offset {accum}
  .amdhsa_group_segment_fixed_size 0
  .amdhsa_kernarg_size 80
  .amdhsa_user_sgpr_count 2
  .amdhsa_user_sgpr_kernarg_segment_ptr 1
  .amdhsa_system_sgpr_workgroup_id_x 1
.end_amdhsa_kernel
"""


def head(name):
    return f'.text\n.globl {name}\n.p2align 8\n.type {name},@function\n{name}:\n'


def build():
    k1, k2 = build_k1('k1'), build_k2('k2')
    print('k1', stats(k1), file=sys.stderr)
    print('k2', stats(k2), file=sys.stderr)
    out = ['; @launch kernel=p1_kernel grid=(256,1,1) block=(256,1,1) lds=163840',
           '; @launch kernel=p2_kernel grid=(256,1,1) block=(256,1,1) lds=131072',
           ]
    out += ['; @launch kernel=p3_kernel grid=(256,1,1) block=(256,1,1) lds=0'] * EXTRA
    out += ['.amdgcn_target "amdgcn-amd-amdhsa--gfx950"']
    txt = '\n'.join(out) + '\n'
    txt += head('p1_kernel') + render(k1) + head('p2_kernel') + render(k2)
    if EXTRA:
        txt += head('p3_kernel') + '  s_endpgm\n'
    txt += kd('p1_kernel', 512, 256) + kd('p2_kernel', 512, 256)
    if EXTRA:
        txt += kd('p3_kernel', 64, 64)
    return txt


if __name__ == '__main__':
    for a in list(sys.argv):
        if a.startswith('--touch='):
            TOUCH = int(a[8:]); sys.argv.remove(a)
        if a.startswith('--extra='):
            EXTRA = int(a[8:]); sys.argv.remove(a)
    if '--stamps' in sys.argv:
        sys.argv.remove('--stamps')
        STAMPS = 's_memtime'
    if '--rstamps' in sys.argv:
        sys.argv.remove('--rstamps')
        STAMPS = 's_memrealtime'
    path = sys.argv[1] if len(sys.argv) > 1 else f'cdna_kernels/{NAME}.s'
    open(path, 'w').write(build())
```
